```python
import torch

def _softmax(x, axis=-1):
    return torch.softmax(x, dim=axis)
def _gelu(x):
    return torch.nn.functional.gelu(x, approximate="tanh")
def _silu(x):
    return torch.nn.functional.silu(x)
def _sigmoid(x):
    return torch.sigmoid(x)
def _layernorm(x, axis=-1, eps=1e-5):
    m = x.mean(dim=axis, keepdim=True)
    v = x.var(dim=axis, keepdim=True, unbiased=False)
    return (x - m) / torch.sqrt(v + eps)
def _scatter_add(tgt, idx, src, axis=0):
    return tgt.clone().index_add_(axis, idx, src)
def _segment_sum(src, seg, n):
    out = torch.zeros((n,) + src.shape[1:], dtype=src.dtype)
    return out.index_add_(0, seg, src)
def _pad(x, pw):
    flat = tuple(v for pair in reversed(pw) for v in pair)
    return torch.nn.functional.pad(x, flat)

kernel_name = 'parallel_sum__gqa_block_cached__mixer_token_mlp__decode'

def setup_inputs():

    _w = (lambda a: (lambda t: t.to(torch.bfloat16) if t.is_floating_point() else t)(torch.as_tensor(a)))
    def _A_setup():
        B, Sq, D = 2, 1, 576
        Hq, Hkv, Sk, Dh = 32, 16, 32768, 128
        assert Hq % Hkv == 0, (Hq, Hkv)
        return {
            "x": _w((lambda *s: torch.randn(*s, dtype=torch.bfloat16) * 0.05)(B, Sq, D)),
            "k_cache": _w((lambda *s: torch.randn(*s, dtype=torch.bfloat16) * 3.2)(B, Hkv, Sk, Dh)),
            "v_cache": _w((lambda *s: torch.randn(*s, dtype=torch.bfloat16) * 0.8)(B, Hkv, Sk, Dh)),
            "wq": _w((lambda *s: torch.randn(*s, dtype=torch.bfloat16) * 3.2)(D, Hq * Dh) * (D ** -0.5)),
            "wo": _w((lambda *s: torch.randn(*s, dtype=torch.bfloat16) * 0.8)(Hq * Dh, D) * ((Hq * Dh) ** -0.5)),
        }
    _A_in = _A_setup()

    def _B_setup():
        B, S, D, F = 2, 1, 576, 4608
        return {
            "x": _w((lambda *s: torch.randn(*s, dtype=torch.bfloat16) * 0.05)(B, S, D)),
            "w1": _w((lambda *s: torch.randn(*s, dtype=torch.bfloat16) * 3.2)(S, F) * (S ** -0.5)),
            "b1": _w((lambda *s: torch.randn(*s, dtype=torch.bfloat16) * 3.2)(F) * 0.02),
            "w2": _w((lambda *s: torch.randn(*s, dtype=torch.bfloat16) * 0.8)(F, S) * (F ** -0.5)),
            "b2": _w((lambda *s: torch.randn(*s, dtype=torch.bfloat16) * 0.8)(S) * 0.02),
        }
    _B_in = _B_setup()

    return {
        "A_x": _A_in["x"],
        "A_k_cache": _A_in["k_cache"],
        "A_v_cache": _A_in["v_cache"],
        "A_wq": _A_in["wq"],
        "A_wo": _A_in["wo"],
        "B_x": _B_in["x"],
        "B_w1": _B_in["w1"],
        "B_b1": _B_in["b1"],
        "B_w2": _B_in["w2"],
        "B_b2": _B_in["b2"],
    }

def reference(A_x, A_k_cache, A_v_cache, A_wq, A_wo, B_x, B_w1, B_b1, B_w2, B_b2):
    def _A_ref(x, k_cache, v_cache, wq, wo):
        B, Sq, D = x.shape
        Hq, Dh = 32, 128
        Hkv = k_cache.shape[1]
        rep = Hq // Hkv
        q = (lambda x, *d: x.permute(*d))((x @ wq).reshape(B, Sq, Hq, Dh), 0, 2, 1, 3)
        k = (lambda x, n, axis: torch.repeat_interleave(x, n, dim=axis))(k_cache, rep, axis=1)
        v = (lambda x, n, axis: torch.repeat_interleave(x, n, dim=axis))(v_cache, rep, axis=1)
        scores = torch.einsum("bhqd,bhkd->bhqk", q, k) * (Dh ** -0.5)
        p = _softmax(scores, axis=-1)
        o = torch.einsum("bhqk,bhkd->bhqd", p, v)
        return (lambda x, *d: x.permute(*d))(o, 0, 2, 1, 3).reshape(B, Sq, Hq * Dh) @ wo

    def _B_ref(x, w1, b1, w2, b2):
        B, S, D = x.shape
        h = _layernorm(x, axis=-1)
        u = torch.einsum("bsd,sf->bdf", h, w1) + b1
        u = _gelu(u)
        y = torch.einsum("bdf,fs->bds", u, w2) + b2
        return (lambda x, *d: x.permute(*d))(y, 0, 2, 1)

    x = A_x
    xn = _layernorm(x, axis=-1)
    return x + _A_ref(xn, A_k_cache, A_v_cache, A_wq, A_wo) + _B_ref(xn, B_w1, B_b1, B_w2, B_b2)
```

```python
import sys, struct, math

NAME = 'parallel_sum__gqa_block_cached__mixer_token_mlp__decode'
KNAME = NAME + '_kernel'

def f32(x):
    return '0x%08x' % struct.unpack('<I', struct.pack('<f', x))[0]

LOG2E = 1.4426950408889634
SCALE = 128 ** -0.5
K0 = math.sqrt(2.0 / math.pi)
GC0 = -2.0 * LOG2E * K0
GC1 = GC0 * 0.044715

HEADER = open('cdna_kernels/%s.s.ref' % NAME).read().split('; Override launch geometry')[0]

L_QP = 0
L_OP = 8192
L_ML = 16384
L_QV = 16640
L_Y = 20736
L_WO = 24576
LDS_BYTES = L_WO + 8 * 6144

B_O = 0
B_ML = 1024
B_Y = 1280
B_B = 1792
WS_BYTES = 256 * 2048
TS_OFF = 1 << 20

def gen(ts=False, dbg=False):
    o = []
    a = o.append
    DPPM = ' row_mask:0xf bank_mask:0xf'
    sW = 's3'
    sHKV, sB, sC, sL = 's30', 's31', 's32', 's33'
    sT0, sT1 = 's34', 's35'
    K_, V_, X_, WQ_, WO_, W1_, B1_, W2_, WS_, OUT_ = [f's[{i}:{i+3}]' for i in range(36, 76, 4)]
    def srd(base, lo, hi, nrec):
        a(f'  s_mov_b32 s{base}, {lo}')
        a(f'  s_and_b32 s{base+1}, {hi}, 0xffff')
        a(f'  s_mov_b32 s{base+2}, {nrec}')
        a(f'  s_mov_b32 s{base+3}, 0x20000')
    sTile, sCnt, sBoff, sWOoff, sM0, sWQoff = 's76', 's77', 's78', 's79', 's80', 's81'
    sScale, sLog2e, sNLog2e, sGC1 = 's82', 's83', 's84', 's85'
    sSame = 's[86:87]'
    sInit, sB2, sIdx, sSpin = 's88', 's89', 's90', 's91'
    sEx = 's[92:93]'
    sTs = 94
    vLane, vKoff, vVoff, vWQoff, vWOoff = 'v0', 'v1', 'v2', 'v3', 'v4'
    SEL = 5
    vM, vNegM, vLs = 'v13', 'v14', 'v15'
    O = 16
    S = 20
    AF = 24
    T = 40
    RING = 48
    WQ = 112
    QF = 112
    BD = 128
    BT = 140
    vBacc, vH, vGC0, vL16 = 'v152', 'v153', 'v154', 'v155'
    WOF = 160
    E = 180
    def vr(b, n=4): return f'v[{b}:{b+n-1}]'

    def stamp(i):
        if ts:
            a(f'  s_memrealtime s[{sTs+2*i}:{sTs+2*i+1}]')

    a(f'{KNAME}:')
    a('  s_cmp_ge_u32 s2, 256')
    a('  s_cbranch_scc1 L_end')
    a('  s_load_dwordx16 s[4:19], s[0:1], 0')
    a('  s_load_dwordx8 s[20:27], s[0:1], 64')
    a('  s_load_dwordx2 s[28:29], s[0:1], 96')
    stamp(0)
    a('  v_lshrrev_b32 v1, 6, v0')
    a('  v_and_b32 v0, 63, v0')
    a(f'  v_readfirstlane_b32 {sW}, v1')
    a(f'  s_and_b32 {sHKV}, s2, 7')
    a(f'  s_lshl_b32 {sHKV}, {sHKV}, 1')
    a(f'  s_bfe_u32 {sT0}, s2, 0x10003')
    a(f'  s_or_b32 {sHKV}, {sHKV}, {sT0}')
    a(f'  s_bfe_u32 {sB}, s2, 0x10004')
    a(f'  s_lshr_b32 {sC}, s2, 5')
    a(f'  s_lshl_b32 {sIdx}, {sHKV}, 3')
    a(f'  s_or_b32 {sIdx}, {sIdx}, {sC}')
    a(f'  s_lshl_b32 {sL}, {sB}, 7')
    a(f'  s_or_b32 {sL}, {sL}, {sIdx}')
    vI, vG = 'v24', 'v25'
    a(f'  v_and_b32 {vI}, 15, v0')
    a(f'  v_lshrrev_b32 {vG}, 4, v0')
    a(f'  v_lshlrev_b32 v26, 4, {vG}')
    a(f'  v_lshl_add_u32 {vKoff}, {vI}, 8, v26')
    a(f'  v_lshlrev_b32 v27, 4, {vI}')
    a(f'  v_lshl_add_u32 {vVoff}, {vG}, 10, v27')
    a(f'  v_lshlrev_b32 v28, 4, v0')
    a(f'  v_lshlrev_b32 v29, 2, v0')
    a(f'  v_mul_u32_u24 v30, 36, {vG}')
    a(f'  v_mul_u32_u24 {vWQoff}, 0x24000, {vG}')
    a(f'  v_add_u32 {vWQoff}, {vWQoff}, v27')
    a(f'  s_lshr_b32 {sT0}, {sL}, 1')
    a(f'  s_lshl_b32 {sT0}, {sT0}, 21')
    a(f'  s_and_b32 {sTile}, {sC}, 1')
    a(f'  s_lshl_b32 {sTile}, {sTile}, 3')
    a(f'  s_or_b32 {sTile}, {sTile}, {sW}')
    a(f'  s_lshl_b32 {sTile}, {sTile}, 12')
    a(f'  s_mul_i32 {sT1}, {sB}, 1152')
    a('  s_waitcnt lgkmcnt(0)')
    a(f'  s_add_u32 s44, s4, {sT1}')
    a('  s_addc_u32 s45, s5, 0')
    a('  s_and_b32 s45, s45, 0xffff')
    a('  s_mov_b32 s46, 1152')
    a('  s_mov_b32 s47, 0x20000')
    XA = 32
    a(f'  s_mul_i32 {sT1}, {sW}, 144')
    a(f'  buffer_load_dwordx4 v[32:35], v28, {X_}, 0 offen')
    a(f'  buffer_load_dword v36, v29, {X_}, 0 offen offset:1024')
    a(f'  buffer_load_dwordx4 v[38:41], v30, {X_}, {sT1} offen')
    a(f'  buffer_load_dwordx4 v[42:45], v30, {X_}, {sT1} offen offset:16')
    a(f'  buffer_load_dword v46, v30, {X_}, {sT1} offen offset:32')
    a(f'  s_lshl_b32 {sT1}, {sIdx}, 3')
    a(f'  s_add_u32 {sT1}, {sT1}, {sW}')
    a(f'  s_lshl_b32 {sT1}, {sT1}, 1')
    a(f'  buffer_load_ushort v47, off, {X_}, {sT1}')
    a(f'  s_add_u32 s36, s6, {sT0}')
    a('  s_addc_u32 s37, s7, 0')
    a('  s_and_b32 s37, s37, 0xffff')
    a('  s_mov_b32 s38, 0x200000')
    a('  s_mov_b32 s39, 0x20000')
    a(f'  s_add_u32 s40, s8, {sT0}')
    a('  s_addc_u32 s41, s9, 0')
    a('  s_and_b32 s41, s41, 0xffff')
    a('  s_mov_b32 s42, 0x200000')
    a('  s_mov_b32 s43, 0x20000')
    def loadK(slot):
        for n in range(4):
            a(f'  buffer_load_dwordx4 {vr(RING+slot*32+n*4)}, {vKoff}, {K_}, {sTile} offen offset:{n*64} nt')
    def loadV(slot):
        for n in range(4):
            a(f'  buffer_load_dwordx4 {vr(RING+slot*32+16+n*4)}, {vVoff}, {V_}, {sTile} offen offset:{n*256} nt')
    loadK(0); loadV(0)
    a(f'  s_add_u32 {sTile}, {sTile}, 0x10000')
    srd(68, 's28', 's29', WS_BYTES)
    a(f'  s_lshl_b32 {sT0}, {sL}, 11')
    a(f'  s_lshl_b32 {sT1}, {sW}, 8')
    a(f'  s_add_u32 {sT0}, {sT0}, {sT1}')
    a('  v_mov_b32 v31, -1')
    a(f'  buffer_store_dword v31, v29, {WS_}, {sT0} offen sc1')
    srd(48, 's10', 's11', 576 * 8192)
    a(f'  s_mul_i32 {sWQoff}, {sW}, {72*8192}')
    a(f'  s_lshl_b32 {sT0}, {sHKV}, 9')
    a(f'  s_add_u32 {sWQoff}, {sWQoff}, {sT0}')
    for n in range(18):
        for h in range(2):
            a(f'  buffer_load_dwordx4 {vr(WQ+(2*n+h)*4)}, {vWQoff}, {WQ_}, {sWQoff} offen offset:{h*256}')
        if n < 17:
            a(f'  s_add_u32 {sWQoff}, {sWQoff}, 8192')
    loadK(1); loadV(1)
    a(f'  s_add_u32 {sTile}, {sTile}, 0x10000')
    srd(52, 's12', 's13', 4096 * 1152)
    srd(56, 's16', 's17', 9216)
    srd(60, 's18', 's19', 9216)
    srd(64, 's20', 's21', 9216)
    srd(72, 's24', 's25', 2304)
    a(f'  s_load_dword {sB2}, s[22:23], 0')
    a(f'  s_mov_b32 {sScale}, {f32(SCALE)}')
    a(f'  s_mov_b32 {sLog2e}, {f32(LOG2E)}')
    a(f'  s_mov_b32 {sNLog2e}, {f32(-LOG2E)}')
    a(f'  s_mov_b32 {sGC1}, {f32(GC1)}')
    a('  s_mov_b32 s86, 0x00ff00ff')
    a('  s_mov_b32 s87, 0xff00ff00')
    a(f'  s_mov_b32 {sInit}, 0')
    a(f'  v_and_b32 v26, 1, v0')
    a(f'  v_cmp_eq_u32 vcc, 1, v26')
    a(f'  v_mov_b32 v26, 0x0c0c0100')
    a(f'  v_mov_b32 v27, 0x01000c0c')
    a(f'  v_cndmask_b32 v26, v26, v27, vcc')
    a(f'  v_mov_b32 v27, 0x0c0c0302')
    a(f'  v_mov_b32 v31, 0x03020c0c')
    a(f'  v_cndmask_b32 v27, v27, v31, vcc')
    a(f'  v_bfe_u32 v31, v0, 1, 2')
    a(f'  v_mov_b32 v37, 0x0c0c0c0c')
    for d in range(4):
        a(f'  v_cmp_eq_u32 vcc, {d}, v31')
        a(f'  s_nop 1')
        a(f'  v_cndmask_b32 v{SEL+d}, v37, v26, vcc')
        a(f'  v_cndmask_b32 v{SEL+4+d}, v37, v27, vcc')
    a(f'  v_mul_u32_u24 v26, 57, v0')
    a(f'  v_lshrrev_b32 v26, 9, v26')
    a(f'  v_mul_u32_u24 v27, 9, v26')
    a(f'  v_sub_u32 v27, v0, v27')
    a(f'  v_lshlrev_b32 v27, 4, v27')
    a(f'  v_mul_u32_u24 {vWOoff}, 1152, v26')
    a(f'  v_add_u32 {vWOoff}, {vWOoff}, v27')

    def wave_sum(v, t):
        for m in ['quad_perm:[1,0,3,2]', 'quad_perm:[2,3,0,1]', 'row_half_mirror', 'row_mirror']:
            a('  s_nop 1')
            a(f'  v_add_f32_dpp {v}, {v}, {v} {m}{DPPM}')
        for p in ['v_permlane16_swap_b32', 'v_permlane32_swap_b32']:
            a(f'  v_mov_b32 {t}, {v}')
            a('  s_nop 1')
            a(f'  {p} {t}, {v}')
            a(f'  v_add_f32 {v}, {v}, {t}')
    def rnd(v):
        a(f'  v_cvt_pk_bf16_f32 {v}, {v}, {v}')
        a(f'  v_and_b32 {v}, 0xffff0000, {v}')

    a('  s_waitcnt vmcnt(53)')
    stamp(1)
    XF = 16
    def ln_stats(vmean_bf, vrden, t0, t1):
        a(f'  v_add_f32 {t0}, v{XF}, v{XF+1}')
        for k in range(2, 10):
            a(f'  v_add_f32 {t0}, {t0}, v{XF+k}')
        wave_sum(t0, t1)
        a(f'  v_mul_f32 {vmean_bf}, {f32(1.0/576)}, {t0}')
        a(f'  v_cmp_gt_u32 vcc, 32, v0')
        a(f'  v_sub_f32 {t1}, v{XF+8}, {vmean_bf}')
        a(f'  v_mul_f32 {t0}, {t1}, {t1}')
        a(f'  v_sub_f32 {t1}, v{XF+9}, {vmean_bf}')
        a(f'  v_fmac_f32 {t0}, {t1}, {t1}')
        a(f'  v_cndmask_b32 {t0}, 0, {t0}, vcc')
        for k in range(8):
            a(f'  v_sub_f32 {t1}, v{XF+k}, {vmean_bf}')
            a(f'  v_fmac_f32 {t0}, {t1}, {t1}')
        wave_sum(t0, t1)
        a(f'  v_mul_f32 {t0}, {f32(1.0/576)}, {t0}')
        rnd(t0)
        a(f'  v_add_f32 {t0}, {f32(1e-5)}, {t0}')
        rnd(t0)
        a(f'  v_sqrt_f32 {t0}, {t0}')
        a('  s_nop 0')
        rnd(t0)
        a(f'  v_rcp_f32 {vrden}, {t0}')
        rnd(vmean_bf)
    for k in range(5):
        a(f'  v_lshlrev_b32 v{XF+2*k}, 16, v{32+k}')
        a(f'  v_and_b32 v{XF+2*k+1}, 0xffff0000, v{32+k}')
    vMu, vRd = 'v26', 'v27'
    ln_stats(vMu, vRd, 'v28', 'v29')
    def norm_pair(lo, hi, dst, mu, rd):
        a(f'  v_sub_f32 {lo}, {lo}, {mu}')
        a(f'  v_sub_f32 {hi}, {hi}, {mu}')
        a(f'  v_cvt_pk_bf16_f32 {lo}, {lo}, {hi}')
        a(f'  v_and_b32 {hi}, 0xffff0000, {lo}')
        a(f'  v_lshlrev_b32 {lo}, 16, {lo}')
        a(f'  v_mul_f32 {lo}, {lo}, {rd}')
        a(f'  v_mul_f32 {hi}, {hi}, {rd}')
        a(f'  v_cvt_pk_bf16_f32 {dst}, {lo}, {hi}')
    for k in range(9):
        r = 38 + k
        a(f'  v_lshlrev_b32 v28, 16, v{r}')
        a(f'  v_and_b32 v29, 0xffff0000, v{r}')
        norm_pair('v28', 'v29', f'v{r}', vMu, vRd)
    for k in range(5):
        norm_pair(f'v{XF+2*k}', f'v{XF+2*k+1}', 'v28', vMu, vRd)
        if k == 4:
            a('  v_cndmask_b32 v28, 0, v28, vcc')
        a(f'  v_lshlrev_b32 v{XF+2*k}, 16, v28')
        a(f'  v_and_b32 v{XF+2*k+1}, 0xffff0000, v28')
    a('  v_lshlrev_b32 v47, 16, v47')
    a('  v_mov_b32 v29, v47')
    norm_pair('v47', 'v29', 'v47', vMu, vRd)
    a('  v_lshlrev_b32 v47, 16, v47')
    ln_stats(vMu, vRd, 'v28', 'v29')
    a('  v_mov_b32 v29, v47')
    norm_pair('v47', 'v29', 'v47', vMu, vRd)
    a('  v_lshlrev_b32 v47, 16, v47')
    for n in range(18):
        af = 24 + (n & 1) * 4
        for d in range(4):
            a(f'  v_perm_b32 v{af+d}, v{38+n//2}, v{38+n//2}, v{SEL+(n&1)*4+d}')
        a(f'  s_waitcnt vmcnt({8 + 34 - 2*n})')
        if n == 0:
            stamp(2)
            a('  s_nop 0')
        else:
            a('  s_nop 0')
        for h in range(2):
            c = '0' if n == 0 else vr(16 + 4*h)
            a(f'  v_mfma_f32_16x16x32_bf16 {vr(16+4*h)}, {vr(af)}, {vr(WQ+(2*n+h)*4)}, {c}')
    vOL = 'v36'
    a(f'  v_and_b32 v32, 15, v0')
    a(f'  v_lshlrev_b32 v32, 5, v32')
    a(f'  v_bfe_u32 v33, v0, 4, 1')
    a(f'  v_lshl_add_u32 v32, v33, 4, v32')
    a(f'  v_lshrrev_b32 v33, 5, v0')
    a(f'  v_lshl_add_u32 v32, v33, 9, v32')
    a(f'  s_lshl_b32 {sT0}, {sW}, 10')
    a(f'  v_add_u32 {vOL}, {sT0}, v32')
    a(f'  v_cmp_gt_u32 vcc, 32, v0')
    a(f'  v_lshlrev_b32 {vL16}, 4, v0')
    a('  s_nop 3')
    for r in range(4):
        a(f'  v_cndmask_b32 v{16+r}, v{20+r}, v{16+r}, vcc')
    a(f'  ds_write_b128 {vOL}, v[16:19] offset:{L_QP}')
    a(f'  v_mov_b32 {vH}, v47')
    a(f'  v_mov_b32 v{E+70}, {vOL}')
    vOLk = f'v{E+70}'
    a(f'  v_mov_b32 {vGC0}, {f32(GC0)}')
    a(f'  v_mov_b32 {vBacc}, 0')
    a(f'  s_mov_b32 {sBoff}, 0')
    a(f'  s_lshl_b32 {sT0}, {sHKV}, 8')
    a(f'  s_lshl_b32 {sT1}, {sW}, 5')
    a(f'  s_add_u32 {sT0}, {sT0}, {sT1}')
    a(f'  s_mul_i32 {sWOoff}, {sT0}, 1152')
    a(f'  s_mul_i32 {sT1}, {sC}, 144')
    a(f'  s_add_u32 {sWOoff}, {sWOoff}, {sT1}')
    a(f'  s_mul_i32 {sM0}, {sW}, 6144')
    a(f'  s_add_u32 {sM0}, {sM0}, {L_WO}')
    def bloads():
        a(f'  s_mov_b32 m0, {sM0}')
        a(f'  buffer_load_dwordx4 {vr(BD)}, {vL16}, {W1_}, {sBoff} offen')
        a(f'  buffer_load_dwordx4 {vr(BD+4)}, {vL16}, {B1_}, {sBoff} offen')
        a(f'  buffer_load_dwordx4 {vr(BD+8)}, {vL16}, {W2_}, {sBoff} offen')
        a(f'  buffer_load_dwordx4 {vWOoff}, {WO_}, {sWOoff} offen lds')
    bloads()
    a('  s_waitcnt lgkmcnt(0)')
    a('  s_barrier')
    a(f'  s_cmp_lg_u32 {sW}, 0')
    a('  s_cbranch_scc1 L_nosig')
    a('  v_mov_b32 v24, 0')
    a('  v_mov_b32 v25, 1')
    a('  s_mov_b64 exec, 1')
    a('  global_atomic_add v24, v25, s[26:27]')
    a('  s_mov_b64 exec, -1')
    a('L_nosig:')
    for k in range(8):
        a(f'  ds_read_b128 {vr(E+4*k)}, {vL16} offset:{L_QP + 1024*k}')
    for k in range(1, 8):
        a(f'  s_waitcnt lgkmcnt({7-k})')
        for r in range(4):
            a(f'  v_add_f32 v{E+r}, v{E+r}, v{E+4*k+r}')
    a(f'  v_cvt_pk_bf16_f32 v{E}, v{E}, v{E+1}')
    a(f'  v_cvt_pk_bf16_f32 v{E+1}, v{E+2}, v{E+3}')
    a(f'  s_lshl_b32 {sT0}, {sW}, 9')
    a(f'  s_add_u32 {sT0}, {sT0}, {L_QV}')
    a(f'  v_lshlrev_b32 v24, 3, v0')
    a(f'  v_add_u32 v24, {sT0}, v24')
    a(f'  ds_write_b64 v24, {vr(E,2)}')
    a(f'  v_bfe_u32 v25, v0, 3, 1')
    a(f'  v_lshlrev_b32 v25, 8, v25')
    a(f'  v_lshrrev_b32 v26, 4, v0')
    a(f'  v_lshl_add_u32 v25, v26, 4, v25')
    a(f'  v_add_u32 v25, {sT0}, v25')
    a('  s_waitcnt lgkmcnt(0)')
    for j in range(4):
        a(f'  ds_read_b128 {vr(QF+4*j)}, v25 offset:{64*j}')
    if dbg:
        a(f'  s_lshl_b32 {sT0}, {sL}, 9')
        a(f'  s_add_u32 {sT0}, {sT0}, {TS_OFF + 65536}')
        a(f'  v_lshlrev_b32 v26, 3, v0')
        a(f'  v_add_u32 v26, {sT0}, v26')
        a(f'  global_store_dwordx2 v26, {vr(E,2)}, s[28:29]')
    a(f'  v_mov_b32 {vM}, {f32(-1e30)}')
    a(f'  v_mov_b32 {vNegM}, {f32(1e30*LOG2E)}')
    a(f'  v_mov_b32 {vLs}, 0')
    for r in range(4):
        a(f'  v_mov_b32 v{O+r}, 0')
    a(f'  s_mov_b32 {sCnt}, 0')
    a('  s_waitcnt lgkmcnt(0)')
    stamp(3)

    rare = []
    def tile(slot):
        kb = RING + slot * 32
        vb = kb + 16
        t = [f'v{T+i}' for i in range(4)]
        mx, tmp = f'v{T+4}', f'v{T+5}'
        pb = [f'v{T+6}', f'v{T+7}']
        a('  s_waitcnt vmcnt(16)')
        for j in range(4):
            c = '0' if j == 0 else vr(S)
            a(f'  v_mfma_f32_16x16x32_bf16 {vr(S)}, {vr(kb+4*j)}, {vr(QF+4*j)}, {c}')
        loadK(slot)
        a('  s_nop 3')
        a(f'  v_cvt_pk_bf16_f32 {t[0]}, v{S}, v{S+1}')
        a(f'  v_cvt_pk_bf16_f32 {t[2]}, v{S+2}, v{S+3}')
        def unpack():
            a(f'  v_and_b32 {t[1]}, 0xffff0000, {t[0]}')
            a(f'  v_lshlrev_b32 {t[0]}, 16, {t[0]}')
            a(f'  v_and_b32 {t[3]}, 0xffff0000, {t[2]}')
            a(f'  v_lshlrev_b32 {t[2]}, 16, {t[2]}')
        unpack()
        for i in range(4):
            a(f'  v_mul_f32 {t[i]}, {sScale}, {t[i]}')
        a(f'  v_cvt_pk_bf16_f32 {t[0]}, {t[0]}, {t[1]}')
        a(f'  v_cvt_pk_bf16_f32 {t[2]}, {t[2]}, {t[3]}')
        unpack()
        a(f'  v_max3_f32 {mx}, {t[0]}, {t[1]}, {t[2]}')
        a(f'  v_max_f32 {mx}, {mx}, {t[3]}')
        a(f'  v_cmp_gt_f32 vcc, {mx}, {vM}')
        a(f'  s_cbranch_vccnz L_rare{slot}')
        a(f'L_back{slot}:')
        for i in range(4):
            a(f'  v_fma_f32 {t[i]}, {t[i]}, {sLog2e}, {vNegM}')
        for i in range(4):
            a(f'  v_exp_f32 {t[i]}, {t[i]}')
        a(f'  v_cvt_pk_bf16_f32 {pb[0]}, {t[0]}, {t[1]}')
        a(f'  v_add_f32 {tmp}, {t[0]}, {t[1]}')
        a(f'  v_cvt_pk_bf16_f32 {pb[1]}, {t[2]}, {t[3]}')
        a(f'  v_add_f32 {mx}, {t[2]}, {t[3]}')
        for r in range(4):
            for d in range(4):
                a(f'  v_perm_b32 v{AF+4*r+d}, {pb[r//2]}, {pb[r//2]}, v{SEL+(r&1)*4+d}')
        a(f'  v_add_f32 {tmp}, {tmp}, {mx}')
        a(f'  v_add_f32 {vLs}, {vLs}, {tmp}')
        a('  s_waitcnt vmcnt(16)')
        for r in range(4):
            a(f'  v_mfma_f32_16x16x32_bf16 {vr(O)}, {vr(AF+4*r)}, {vr(vb+4*r)}, {vr(O)}')
        loadV(slot)
        a(f'  s_add_u32 {sTile}, {sTile}, 0x10000')
        r_ = rare.append
        r_(f'L_rare{slot}:')
        for p in ['v_permlane32_swap_b32', 'v_permlane16_swap_b32']:
            r_(f'  v_mov_b32 {tmp}, {mx}')
            r_('  s_nop 1')
            r_(f'  {p} {tmp}, {mx}')
            r_(f'  v_max_f32 {mx}, {mx}, {tmp}')
        r_(f'  v_max_f32 {mx}, {mx}, {vM}')
        r_(f'  v_sub_f32 {tmp}, {vM}, {mx}')
        r_(f'  v_mul_f32 {tmp}, {sLog2e}, {tmp}')
        r_(f'  v_exp_f32 {tmp}, {tmp}')
        r_(f'  v_mov_b32 {vM}, {mx}')
        r_(f'  v_mul_f32 {vNegM}, {sNLog2e}, {mx}')
        r_(f'  v_mul_f32 {vLs}, {vLs}, {tmp}')
        r_(f'  v_mov_b32_dpp {mx}, {tmp} row_ror:8{DPPM}')
        r_(f'  v_cndmask_b32 {mx}, {mx}, {tmp}, {sSame}')
        for r in range(4):
            r_(f'  v_mul_f32 v{O+r}, v{O+r}, {mx}')
        r_(f'  s_branch L_back{slot}')

    a('.p2align 6')
    a('L_loop:')
    tile(0)
    tile(1)
    a('  s_waitcnt vmcnt(17)')
    a(f'  s_cmp_ge_u32 {sCnt}, 9')
    a('  s_cbranch_scc1 L_bskip')
    for k in range(4):
        x0, x1, y0, y1, pk = [f'v{BT+i}' for i in range(5)]
        a(f'  v_lshlrev_b32 {x0}, 16, v{BD+k}')
        a(f'  v_and_b32 {x1}, 0xffff0000, v{BD+k}')
        a(f'  v_mul_f32 {x0}, {vH}, {x0}')
        a(f'  v_mul_f32 {x1}, {vH}, {x1}')
        a(f'  v_cvt_pk_bf16_f32 {pk}, {x0}, {x1}')
        a(f'  v_lshlrev_b32 {y0}, 16, v{BD+4+k}')
        a(f'  v_and_b32 {y1}, 0xffff0000, v{BD+4+k}')
        a(f'  v_lshlrev_b32 {x0}, 16, {pk}')
        a(f'  v_and_b32 {x1}, 0xffff0000, {pk}')
        a(f'  v_add_f32 {x0}, {x0}, {y0}')
        a(f'  v_add_f32 {x1}, {x1}, {y1}')
        a(f'  v_cvt_pk_bf16_f32 {pk}, {x0}, {x1}')
        a(f'  v_lshlrev_b32 {x0}, 16, {pk}')
        a(f'  v_and_b32 {x1}, 0xffff0000, {pk}')
        a(f'  v_mul_f32 {y0}, {x0}, {x0}')
        a(f'  v_mul_f32 {y1}, {x1}, {x1}')
        a(f'  v_fma_f32 {y0}, {y0}, {sGC1}, {vGC0}')
        a(f'  v_fma_f32 {y1}, {y1}, {sGC1}, {vGC0}')
        a(f'  v_mul_f32 {y0}, {y0}, {x0}')
        a(f'  v_mul_f32 {y1}, {y1}, {x1}')
        a(f'  v_exp_f32 {y0}, {y0}')
        a(f'  v_exp_f32 {y1}, {y1}')
        a(f'  v_add_f32 {y0}, 1.0, {y0}')
        a(f'  v_add_f32 {y1}, 1.0, {y1}')
        a(f'  v_rcp_f32 {y0}, {y0}')
        a(f'  v_rcp_f32 {y1}, {y1}')
        a(f'  v_mul_f32 {y0}, {y0}, {x0}')
        a(f'  v_mul_f32 {y1}, {y1}, {x1}')
        a(f'  v_cvt_pk_bf16_f32 {pk}, {y0}, {y1}')
        a(f'  v_lshlrev_b32 {y0}, 16, v{BD+8+k}')
        a(f'  v_and_b32 {y1}, 0xffff0000, v{BD+8+k}')
        a(f'  v_lshlrev_b32 {x0}, 16, {pk}')
        a(f'  v_and_b32 {x1}, 0xffff0000, {pk}')
        a(f'  v_fmac_f32 {vBacc}, {x0}, {y0}')
        a(f'  v_fmac_f32 {vBacc}, {x1}, {y1}')
    a('L_bskip:')
    a(f'  s_add_u32 {sCnt}, {sCnt}, 1')
    a(f'  s_add_u32 {sBoff}, {sBoff}, 1024')
    a(f'  s_cmp_lt_u32 {sCnt}, 6')
    a(f'  s_cselect_b32 {sT0}, 1008, 0')
    a(f'  s_add_u32 {sM0}, {sM0}, {sT0}')
    a(f'  s_add_u32 {sWOoff}, {sWOoff}, {7*1152}')
    a(f'  s_cmp_lt_u32 {sCnt}, 5')
    a(f'  s_cselect_b32 {sWOoff}, {sWOoff}, 0x7f000000')
    bloads()
    a(f'  s_cmp_lg_u32 {sCnt}, 12')
    a('  s_cbranch_scc1 L_nochk')
    a(f'  s_load_dword {sInit}, s[26:27], 0 glc')
    a('L_nochk:')
    a(f'  s_cmp_lt_u32 {sCnt}, 16')
    a('  s_cbranch_scc1 L_loop')

    stamp(1) if False else None
    if ts:
        a(f'  s_memrealtime s[{sTs+2}:{sTs+3}]')
    tmp = f'v{T}'
    for p in ['v_permlane32_swap_b32', 'v_permlane16_swap_b32']:
        a(f'  v_mov_b32 {tmp}, {vLs}')
        a('  s_nop 1')
        a(f'  {p} {tmp}, {vLs}')
        a(f'  v_add_f32 {vLs}, {vLs}, {tmp}')
    a(f'  ds_write_b128 {vOLk}, {vr(O)} offset:{L_OP}')
    a(f'  v_bfe_u32 v24, v0, 3, 1')
    a(f'  v_lshlrev_b32 v24, 6, v24')
    a(f'  s_lshl_b32 {sT0}, {sW}, 3')
    a(f'  v_add_u32 v24, {sT0}, v24')
    a(f'  v_mov_b32 v26, {vM}')
    a(f'  v_mov_b32 v27, {vLs}')
    a('  s_mov_b64 exec, 0x101')
    a(f'  ds_write_b64 v24, v[26:27] offset:{L_ML}')
    a('  s_mov_b64 exec, -1')
    a('  s_waitcnt lgkmcnt(0)')
    a('  s_barrier')
    a(f'  s_lshl_b32 {sT1}, {sL}, 11')
    a(f'  s_cmp_lg_u32 {sW}, 0')
    a('  s_cbranch_scc1 L_nomerge')
    a(f'  v_lshrrev_b32 v24, 5, v0')
    a(f'  v_lshlrev_b32 v24, 6, v24')
    ML = E + 32
    for k in range(4):
        a(f'  ds_read_b128 {vr(ML+4*k)}, v24 offset:{L_ML+16*k}')
    for k in range(8):
        a(f'  ds_read_b128 {vr(E+4*k)}, {vL16} offset:{L_OP+1024*k}')
    a('  s_waitcnt lgkmcnt(8)')
    a(f'  v_max3_f32 v26, v{ML}, v{ML+2}, v{ML+4}')
    a(f'  v_max3_f32 v26, v26, v{ML+6}, v{ML+8}')
    a(f'  v_max3_f32 v26, v26, v{ML+10}, v{ML+12}')
    a(f'  v_max_f32 v26, v26, v{ML+14}')
    a(f'  v_mul_f32 v25, {sNLog2e}, v26')
    for k in range(8):
        a(f'  v_fma_f32 v{ML+2*k}, v{ML+2*k}, {sLog2e}, v25')
    for k in range(8):
        a(f'  v_exp_f32 v{ML+2*k}, v{ML+2*k}')
    a(f'  v_mul_f32 v27, v{ML}, v{ML+1}')
    for k in range(1, 8):
        a(f'  v_fmac_f32 v27, v{ML+2*k}, v{ML+2*k+1}')
    a('  s_waitcnt lgkmcnt(0)')
    for r in range(4):
        a(f'  v_mul_f32 v{28+r}, v{ML}, v{E+r}')
    for k in range(1, 8):
        for r in range(4):
            a(f'  v_fmac_f32 v{28+r}, v{ML+2*k}, v{E+4*k+r}')
    for r in range(4):
        a(f'  v_min_u32 v{28+r}, -2, v{28+r}')
    a(f'  buffer_store_dwordx4 v[28:31], {vL16}, {WS_}, {sT1} offen sc1')
    a('  v_min_u32 v26, -2, v26')
    a('  v_min_u32 v27, -2, v27')
    a(f'  v_lshrrev_b32 v24, 3, v24')
    a('  s_mov_b32 exec_lo, 1')
    a('  s_mov_b32 exec_hi, 1')
    a(f'  buffer_store_dwordx2 v[26:27], v24, {WS_}, {sT1} offen offset:{B_ML} sc1')
    a('  s_mov_b64 exec, -1')
    a('L_nomerge:')
    if ts:
        a(f'  s_memrealtime s[{sTs+4}:{sTs+5}]')
    a(f'  s_cmp_ge_u32 {sIdx}, 72')
    a('  s_cbranch_scc1 L_nob')
    wave_sum(vBacc, 'v24')
    rnd(vBacc)
    a(f'  s_lshl_b32 {sB2}, {sB2}, 16')
    a(f'  v_add_f32 {vBacc}, {sB2}, {vBacc}')
    rnd(vBacc)
    a(f'  s_lshl_b32 {sT0}, {sW}, 2')
    a(f'  s_add_u32 {sT0}, {sT0}, {sT1}')
    a('  s_mov_b64 exec, 1')
    a(f'  buffer_store_dword {vBacc}, off, {WS_}, {sT0} offset:{B_B} sc1')
    a('  s_mov_b64 exec, -1')
    a('L_nob:')
    a(f'  v_lshrrev_b32 v24, 4, v0')
    a(f'  v_mul_u32_u24 v24, 1152, v24')
    a(f'  v_bfe_u32 v25, v0, 2, 2')
    a(f'  v_mul_u32_u24 v25, 144, v25')
    a(f'  v_and_b32 v26, 3, v0')
    a(f'  v_lshlrev_b32 v26, 3, v26')
    a(f'  v_add3_u32 v24, v24, v25, v26')
    a(f'  s_mul_i32 {sT0}, {sW}, 6144')
    a(f'  s_add_u32 {sT0}, {sT0}, {L_WO}')
    a(f'  v_add_u32 v24, {sT0}, v24')
    a(f'  v_and_b32 v25, 7, v0')
    a(f'  v_lshlrev_b32 v25, 11, v25')
    a(f'  v_lshrrev_b32 v26, 3, v0')
    a(f'  v_lshl_add_u32 v26, v26, 4, v25')
    a(f'  s_and_b32 {sT0}, {sL}, 0xf8')
    a(f'  s_lshl_b32 {sT0}, {sT0}, 11')
    a(f'  s_lshl_b32 {sWQoff}, {sW}, 7')
    a(f'  s_add_u32 {sWQoff}, {sWQoff}, {sT0}')
    a(f'  s_lshr_b32 {sBoff}, {sW}, 2')
    a(f'  s_lshl_b32 {sBoff}, {sBoff}, 3')
    a(f'  s_add_u32 {sBoff}, {sBoff}, {sT0}')
    a('  s_waitcnt vmcnt(0)')
    for ct in range(5):
        a(f'  ds_read_b64_tr_b16 {vr(WOF+4*ct,2)}, v24 offset:{ct*32}')
        a(f'  ds_read_b64_tr_b16 {vr(WOF+4*ct+2,2)}, v24 offset:{ct*32+4*144}')
    a(f'  s_mov_b32 {sSpin}, 0')
    a(f'  s_cmp_eq_u32 {sInit}, 256')
    a('  s_cbranch_scc1 L_poll1')
    a('  v_mov_b32 v28, 0')
    a('L_initpoll:')
    a('  global_load_dword v29, v28, s[26:27] sc1')
    a(f'  s_add_u32 {sSpin}, {sSpin}, 1')
    a('  s_waitcnt vmcnt(0)')
    a(f'  v_readfirstlane_b32 {sInit}, v29')
    a(f'  s_cmp_ge_u32 {sSpin}, 0x8000')
    a('  s_cbranch_scc1 L_poll1')
    a('  s_sleep 4')
    a(f'  s_cmp_lg_u32 {sInit}, 256')
    a('  s_cbranch_scc1 L_initpoll')
    a('L_poll1:')
    a(f'  buffer_load_dwordx4 v[28:31], v26, {WS_}, {sWQoff} offen sc1')
    a(f'  buffer_load_dwordx2 v[32:33], v25, {WS_}, {sBoff} offen offset:{B_ML} sc1')
    a(f'  s_add_u32 {sSpin}, {sSpin}, 1')
    a('  s_waitcnt vmcnt(0)')
    a('  v_max3_u32 v34, v28, v29, v30')
    a('  v_max3_u32 v34, v34, v31, v32')
    a('  v_max_u32 v34, v34, v33')
    a('  v_cmp_eq_u32 vcc, -1, v34')
    a('  s_cbranch_vccz L_got1')
    a('  s_sleep 1')
    a(f'  s_cmp_lt_u32 {sSpin}, 0x10000')
    a('  s_cbranch_scc1 L_poll1')
    a('L_got1:')
    if ts:
        a(f'  s_memrealtime s[{sTs+6}:{sTs+7}]')
    R8 = ['quad_perm:[1,0,3,2]', 'quad_perm:[2,3,0,1]', 'row_half_mirror']
    a('  v_mov_b32 v34, v32')
    for m in R8:
        a('  s_nop 1')
        a(f'  v_max_f32_dpp v34, v34, v34 {m}{DPPM}')
    a('  v_sub_f32 v32, v32, v34')
    a(f'  v_mul_f32 v32, {sLog2e}, v32')
    a('  v_exp_f32 v32, v32')
    a('  s_nop 0')
    a('  v_mul_f32 v33, v33, v32')
    for r in range(4):
        a(f'  v_mul_f32 v{28+r}, v{28+r}, v32')
    for m in R8:
        a(f'  v_add_f32_dpp v33, v33, v33 {m}{DPPM}')
        for r in range(4):
            a(f'  v_add_f32_dpp v{28+r}, v{28+r}, v{28+r} {m}{DPPM}')
    a('  v_rcp_f32 v33, v33')
    a('  s_nop 0')
    for r in range(4):
        a(f'  v_mul_f32 v{28+r}, v{28+r}, v33')
    a('  v_cvt_pk_bf16_f32 v36, v28, v29')
    a('  v_cvt_pk_bf16_f32 v37, v30, v31')
    a('  s_nop 1')
    a(f'  v_mov_b32_dpp v38, v36 row_ror:8{DPPM}')
    a(f'  v_mov_b32_dpp v39, v37 row_ror:8{DPPM}')
    if dbg:
        a(f'  s_lshl_b32 {sT0}, {sL}, 9')
        a(f'  s_add_u32 {sT0}, {sT0}, {TS_OFF + 262144}')
        a(f'  s_lshl_b32 {sCnt}, {sW}, 6')
        a(f'  s_add_u32 {sT0}, {sT0}, {sCnt}')
        a(f'  v_add_u32 v40, {sT0}, v0')
        a('  s_mov_b32 exec_lo, 0x10001')
        a('  s_mov_b32 exec_hi, 0x10001')
        a(f'  global_store_dwordx4 v40, v[36:39], s[28:29]')
        a('  s_mov_b64 exec, -1')
    a(f'  s_mul_i32 {sT0}, {sW}, 320')
    a('  v_lshlrev_b32 v40, 2, v0')
    a(f'  v_add_u32 v40, {sT0}, v40')
    a('  s_waitcnt lgkmcnt(0)')
    for ct in range(5):
        a(f'  v_mfma_f32_16x16x32_bf16 {vr(E+4*ct)}, v[36:39], {vr(WOF+4*ct)}, 0')
    a('  s_mov_b64 exec, 0xffff')
    a('  s_nop 7')
    for ct in range(5):
        a(f'  ds_write_b32 v40, v{E+4*ct} offset:{L_Y+64*ct}')
    a('  s_mov_b64 exec, -1')
    a('  s_waitcnt lgkmcnt(0)')
    a('  s_barrier')
    a(f'  s_cmp_lg_u32 {sW}, 0')
    a('  s_cbranch_scc1 L_fin')
    a('  s_mov_b64 exec, 0x3ffff')
    for k in range(8):
        a(f'  ds_read_b128 {vr(E+4*k)}, {vL16} offset:{L_Y+320*k}')
    for k in range(1, 8):
        a(f'  s_waitcnt lgkmcnt({7-k})')
        for r in range(4):
            a(f'  v_add_f32 v{E+r}, v{E+r}, v{E+4*k+r}')
    for r in range(4):
        a(f'  v_min_u32 v{E+r}, -2, v{E+r}')
    a(f'  buffer_store_dwordx4 {vr(E)}, {vL16}, {WS_}, {sT1} offen offset:{B_Y} sc1')
    a('  s_mov_b64 exec, -1')
    a(f'  s_lshl_b32 {sT0}, {sC}, 1')
    a(f'  s_add_u32 {sT0}, {sT0}, {sB}')
    a(f'  s_cmp_lg_u32 {sT0}, {sHKV}')
    a('  s_cbranch_scc1 L_fin')
    a('  v_and_b32 v24, 31, v0')
    a('  v_lshrrev_b32 v25, 5, v0')
    a('  v_lshlrev_b32 v25, 14, v25')
    a('  v_lshl_add_u32 v25, v24, 4, v25')
    a(f'  s_lshl_b32 {sT0}, {sB}, 7')
    a(f'  s_add_u32 {sT0}, {sT0}, {sC}')
    a(f'  s_lshl_b32 {sT0}, {sT0}, 11')
    a('  v_lshrrev_b32 v26, 1, v24')
    a('  v_lshlrev_b32 v26, 11, v26')
    a('  v_and_b32 v27, 1, v24')
    a('  v_lshl_add_u32 v26, v27, 4, v26')
    a(f'  s_mul_i32 {sT1}, {sC}, 9')
    a(f'  s_lshl_b32 {sCnt}, {sB}, 7')
    a(f'  s_add_u32 {sT1}, {sT1}, {sCnt}')
    a(f'  s_lshl_b32 {sT1}, {sT1}, 11')
    a('  v_lshlrev_b32 v27, 3, v24')
    a(f'  s_mul_i32 {sCnt}, {sC}, 144')
    a('  s_mov_b32 exec_lo, 0x3ffff')
    a('  s_mov_b32 exec_hi, 0x3ffff')
    a(f'  buffer_load_dwordx2 v[28:29], v27, {X_}, {sCnt} offen')
    a(f'  s_mov_b32 {sSpin}, 0')
    a('L_poll2:')
    a(f'  s_mov_b32 {sBoff}, {sT0}')
    for k in range(8):
        a(f'  buffer_load_dwordx4 {vr(E+4*k)}, v25, {WS_}, {sBoff} offen offset:{B_Y} sc1')
        if k < 7:
            a(f'  s_add_u32 {sBoff}, {sBoff}, 0x8000')
    a(f'  buffer_load_dwordx4 {vr(E+32)}, v26, {WS_}, {sT1} offen offset:{B_B} sc1')
    a(f'  s_add_u32 {sSpin}, {sSpin}, 1')
    a('  s_waitcnt vmcnt(0)')
    a(f'  v_max_u32 v34, v{E}, v{E+1}')
    for k in range(1, 18):
        a(f'  v_max3_u32 v34, v34, v{E+2*k}, v{E+2*k+1}')
    a('  v_cmp_eq_u32 vcc, -1, v34')
    a('  s_cbranch_vccz L_got2')
    a('  s_sleep 1')
    a(f'  s_cmp_lt_u32 {sSpin}, 0x10000')
    a('  s_cbranch_scc1 L_poll2')
    a('L_got2:')
    for k in range(1, 8):
        for r in range(4):
            a(f'  v_add_f32 v{E+r}, v{E+r}, v{E+4*k+r}')
    a('  s_mov_b64 exec, -1')
    for r in range(4):
        a(f'  v_mov_b32 v{E+4+r}, v{E+r}')
    a('  s_nop 1')
    for r in range(4):
        a(f'  v_permlane32_swap_b32 v{E+4+r}, v{E+r}')
    for r in range(4):
        a(f'  v_add_f32 v{E+r}, v{E+r}, v{E+4+r}')
    a(f'  v_cvt_pk_bf16_f32 v30, v{E}, v{E+1}')
    a(f'  v_cvt_pk_bf16_f32 v31, v{E+2}, v{E+3}')
    for k in range(2):
        a(f'  v_lshlrev_b32 v{E+2*k}, 16, v{30+k}')
        a(f'  v_and_b32 v{E+2*k+1}, 0xffff0000, v{30+k}')
        a(f'  v_lshlrev_b32 v{E+4+2*k}, 16, v{28+k}')
        a(f'  v_and_b32 v{E+4+2*k+1}, 0xffff0000, v{28+k}')
    for r in range(4):
        a(f'  v_add_f32 v{E+r}, v{E+r}, v{E+4+r}')
    a(f'  v_cvt_pk_bf16_f32 v30, v{E}, v{E+1}')
    a(f'  v_cvt_pk_bf16_f32 v31, v{E+2}, v{E+3}')
    for k in range(2):
        a(f'  v_lshlrev_b32 v{E+2*k}, 16, v{30+k}')
        a(f'  v_and_b32 v{E+2*k+1}, 0xffff0000, v{30+k}')
    for r in range(4):
        a(f'  v_add_f32 v{E+r}, v{E+r}, v{E+32+r}')
    a(f'  v_cvt_pk_bf16_f32 v30, v{E}, v{E+1}')
    a(f'  v_cvt_pk_bf16_f32 v31, v{E+2}, v{E+3}')
    a(f'  s_mul_i32 {sT0}, {sB}, 1152')
    a(f'  s_add_u32 {sT0}, {sT0}, {sCnt}')
    a('  s_mov_b64 exec, 0x3ffff')
    a(f'  buffer_store_dwordx2 v[30:31], v27, {OUT_}, {sT0} offen')
    a('  s_mov_b64 exec, -1')
    a('L_fin:')
    if ts:
        a(f'  s_cmp_lg_u32 {sW}, 0')
        a('  s_cbranch_scc1 L_end')
        a('  s_waitcnt vmcnt(0)')
        a('  s_memrealtime s[76:77]')
        a('  s_waitcnt lgkmcnt(0)')
        for i in range(8):
            a(f'  v_mov_b32 v{24+i}, s{sTs+i}')
        a('  v_mov_b32 v32, s76')
        a('  v_mov_b32 v33, s77')
        a('  s_lshl_b32 s78, s2, 6')
        a(f'  s_add_u32 s78, s78, {TS_OFF}')
        a('  v_mov_b32 v1, s78')
        a('  s_mov_b64 exec, 1')
        a('  global_store_dwordx4 v1, v[24:27], s[28:29]')
        a('  global_store_dwordx4 v1, v[28:31], s[28:29] offset:16')
        a('  global_store_dwordx2 v1, v[32:33], s[28:29] offset:32')
    a('L_end:')
    a('  s_endpgm')
    o += rare
    body = '\n'.join(o)
    txt = HEADER + f'''; @launch grid=(256,1,1) block=(512,1,1) lds={LDS_BYTES}
.amdgcn_target "amdgcn-amd-amdhsa--gfx950"
.text
.globl {KNAME}
.p2align 8
.type {KNAME},@function
{body}
.section .rodata,"a"
.p2align 6
.amdhsa_kernel {KNAME}
  .amdhsa_next_free_vgpr 256
  .amdhsa_next_free_sgpr 102
  .amdhsa_accum_offset 256
  .amdhsa_group_segment_fixed_size 0
  .amdhsa_kernarg_size 104
  .amdhsa_user_sgpr_count 2
  .amdhsa_user_sgpr_kernarg_segment_ptr 1
  .amdhsa_system_sgpr_workgroup_id_x 1
  .amdhsa_float_denorm_mode_32 3
.end_amdhsa_kernel
'''
    return txt

if __name__ == '__main__':
    out = sys.argv[1]
    open(out, 'w').write(gen(ts='ts' in sys.argv[2:], dbg='dbg' in sys.argv[2:]))
```

```python
import sys, struct, math

NAME = 'parallel_sum__gqa_block_cached__mixer_token_mlp__decode'
KNAME = NAME + '_kernel'

def f32(x):
    return '0x%08x' % struct.unpack('<I', struct.pack('<f', x))[0]

LOG2E = 1.4426950408889634
SCALE = 128 ** -0.5
K0 = math.sqrt(2.0 / math.pi)
GC0 = -2.0 * LOG2E * K0
GC1 = GC0 * 0.044715

HEADER = open('cdna_kernels/%s.s.ref' % NAME).read().split('; Override launch geometry')[0]

L_Q = 0
L_TAG = 512
L_CNT = 576
L_ML = 1024
L_Y = 1280
L_OP = 4096
L_WO = 12288
LDS_BYTES = 12288 + 37 * 1008 + 64
LDS_BYTES = (LDS_BYTES + 255) // 256 * 256

QBOX = 4096
BLK = 2 << 20
B_O, B_ML, B_Y, B_B = 0, 2048, 2304, 3072
EP2 = BLK + 256 * 4096
WS_BYTES = EP2 + 256
TS_OFF = 1 << 20

def gen(ts=False, exp=(), D=4, NSTREAM=7):
    o = []
    a = o.append
    DPPM = ' row_mask:0xf bank_mask:0xf'
    sW = 's3'
    sHKV, sB, sC, sL = 's30', 's31', 's32', 's33'
    sT0, sT1 = 's34', 's35'
    K_, V_, X_, WQ_, WO_, WS_, OUT_ = [f's[{i}:{i+3}]' for i in range(36, 64, 4)]
    def srd(base, lo, hi, nrec):
        a(f'  s_mov_b32 s{base}, {lo}')
        a(f'  s_and_b32 s{base+1}, {hi}, 0xffff')
        a(f'  s_mov_b32 s{base+2}, {nrec}')
        a(f'  s_mov_b32 s{base+3}, 0x20000')
    sOff = [f's{64+i}' for i in range(6)]
    sScale, sLog2e, sNLog2e, sGC1 = 's70', 's71', 's72', 's73'
    sSame = 's[74:75]'
    sTag, sIdx, sSpin, sB2 = 's76', 's77', 's78', 's79'
    sU = [f's{80+i}' for i in range(14)]
    sForce = 's80'
    sTs = 94
    vKoff, vVoff, vTick, vCnt = 'v1', 'v2', 'v3', 'v4'
    SEL = 5
    vM, vNegM, vLs = 'v13', 'v14', 'v15'
    O, S, AF, T, QF, RING = 16, 20, 24, 40, 48, 64
    vInc = 'v255'
    vTagV = 'v254'
    vL16 = 'v253'
    assert D <= 5
    def vr(b, n=4): return f'v[{b}:{b+n-1}]'
    EV = {'start': 0, 'qready': 1, 'loopend': 2, 'hop1': 3}
    if isinstance(ts, dict): EV = ts
    def stamp(name):
        if ts and name in EV:
            i = EV[name]
            a(f'  s_memrealtime s[{sTs+2*i}:{sTs+2*i+1}]')
    def rnd(v):
        a(f'  v_cvt_pk_bf16_f32 {v}, {v}, {v}')
        a(f'  v_and_b32 {v}, 0xffff0000, {v}')
    def selectors(t0, t1, t2, t3):
        a(f'  v_and_b32 {t0}, 1, v0')
        a(f'  v_cmp_eq_u32 vcc, 1, {t0}')
        a(f'  v_mov_b32 {t0}, 0x0c0c0100')
        a(f'  v_mov_b32 {t1}, 0x01000c0c')
        a(f'  v_cndmask_b32 {t0}, {t0}, {t1}, vcc')
        a(f'  v_mov_b32 {t1}, 0x0c0c0302')
        a(f'  v_mov_b32 {t2}, 0x03020c0c')
        a(f'  v_cndmask_b32 {t1}, {t1}, {t2}, vcc')
        a(f'  v_bfe_u32 {t2}, v0, 1, 2')
        a(f'  v_mov_b32 {t3}, 0x0c0c0c0c')
        for d in range(4):
            a(f'  v_cmp_eq_u32 vcc, {d}, {t2}')
            a(f'  s_nop 1')
            a(f'  v_cndmask_b32 v{SEL+d}, {t3}, {t0}, vcc')
            a(f'  v_cndmask_b32 v{SEL+4+d}, {t3}, {t1}, vcc')
    def consts():
        srd(56, 's28', 's29', WS_BYTES)
        a(f'  s_mov_b32 {sLog2e}, {f32(LOG2E)}')
        a(f'  s_mov_b32 {sNLog2e}, {f32(-LOG2E)}')
        a(f'  v_lshlrev_b32 {vL16}, 4, v0')

    a(f'{KNAME}:')
    a('  s_cmp_ge_u32 s2, 256')
    a('  s_cbranch_scc1 L_end')
    a('  s_load_dwordx16 s[4:19], s[0:1], 0')
    a('  s_load_dwordx8 s[20:27], s[0:1], 64')
    a('  s_load_dwordx2 s[28:29], s[0:1], 96')
    if ts:
        for i in range(8):
            a(f'  s_mov_b32 s{sTs+i}, 0')
    stamp('start')
    a('  v_lshrrev_b32 v1, 6, v0')
    a('  v_and_b32 v0, 63, v0')
    a(f'  v_readfirstlane_b32 {sW}, v1')
    a(f'  s_and_b32 {sHKV}, s2, 7')
    a(f'  s_lshl_b32 {sHKV}, {sHKV}, 1')
    a(f'  s_bfe_u32 {sT0}, s2, 0x10003')
    a(f'  s_or_b32 {sHKV}, {sHKV}, {sT0}')
    a(f'  s_bfe_u32 {sB}, s2, 0x10004')
    a(f'  s_lshr_b32 {sC}, s2, 5')
    a(f'  s_lshl_b32 {sIdx}, {sHKV}, 3')
    a(f'  s_or_b32 {sIdx}, {sIdx}, {sC}')
    a(f'  s_lshl_b32 {sL}, {sB}, 7')
    a(f'  s_or_b32 {sL}, {sL}, {sIdx}')
    a('  v_and_b32 v24, 15, v0')
    a('  v_lshrrev_b32 v25, 4, v0')
    a('  v_lshlrev_b32 v27, 4, v24')
    a(f'  s_cmp_eq_u32 {sW}, 0')
    a('  s_cbranch_scc1 L_helper')

    a('  v_lshlrev_b32 v26, 4, v25')
    a(f'  v_lshl_add_u32 {vKoff}, v24, 8, v26')
    a(f'  v_lshl_add_u32 {vVoff}, v25, 10, v27')
    a(f'  s_lshr_b32 {sT0}, {sL}, 1')
    a(f'  s_lshl_b32 {sT0}, {sT0}, 21')
    a(f'  s_and_b32 {sT1}, {sC}, 1')
    a(f'  s_lshl_b32 {sT1}, {sT1}, 15')
    a(f'  s_add_u32 {sT0}, {sT0}, {sT1}')
    a(f'  s_sub_u32 s38, 0x200000, {sT1}')
    a('  s_mov_b32 s42, s38')
    a('  s_mov_b32 s39, 0x20000')
    a('  s_mov_b32 s43, 0x20000')
    a(f'  s_cmp_le_u32 {sW}, 4')
    a(f'  s_cselect_b32 {sU[1]}, 4, 3')
    a(f'  s_cselect_b32 {sU[2]}, -1, {4*D-5}')
    a(f'  s_lshl_b32 {sU[1]}, {sU[1]}, 12')
    a(f'  s_add_u32 {sU[2]}, {sU[2]}, {sW}')
    a(f'  s_lshl_b32 {sU[2]}, {sU[2]}, 12')
    for d in range(D):
        a(f'  s_and_b32 {sT1}, {sU[2]}, 0xffff8000')
        a(f'  s_add_u32 {sOff[d]}, {sU[2]}, {sT1}')
        if d < D - 1:
            a(f'  s_add_u32 {sU[2]}, {sU[2]}, {sU[1]}')
    a('  s_waitcnt lgkmcnt(0)')
    a(f'  s_add_u32 s36, s6, {sT0}')
    a('  s_addc_u32 s37, s7, 0')
    a('  s_and_b32 s37, s37, 0xffff')
    a(f'  s_add_u32 s40, s8, {sT0}')
    a('  s_addc_u32 s41, s9, 0')
    a('  s_and_b32 s41, s41, 0xffff')
    def loadK(slot):
        for n in range(4):
            a(f'  buffer_load_dwordx4 {vr(RING+slot*32+n*4)}, {vKoff}, {K_}, {sOff[slot]} offen offset:{n*64} nt')
    def loadV(slot):
        for n in range(4):
            a(f'  buffer_load_dwordx4 {vr(RING+slot*32+16+n*4)}, {vVoff}, {V_}, {sOff[slot]} offen offset:{n*256} nt')
    for d in range(D):
        loadK(d); loadV(d)
    stamp('issued')
    consts()
    a(f'  s_mov_b32 {sScale}, {f32(SCALE)}')
    a('  s_mov_b32 s74, 0x00ff00ff')
    a('  s_mov_b32 s75, 0xff00ff00')
    selectors('v26', 'v27', 'v28', 'v29')
    a(f'  s_cmp_le_u32 {sW}, {NSTREAM}')
    a(f'  s_cselect_b32 {sT0}, 4096, 0')
    a(f'  s_cselect_b32 {sForce}, 0, 0x40000000')
    a(f'  v_mov_b32 {vInc}, {sT0}')
    a(f'  v_mov_b32 {vCnt}, {L_CNT}')
    a(f'  v_mov_b32 {vM}, {f32(-1e30)}')
    a(f'  v_mov_b32 {vNegM}, {f32(1e30*LOG2E)}')
    a(f'  v_mov_b32 {vLs}, 0')
    for r in range(4):
        a(f'  v_mov_b32 v{O+r}, 0')
    a('  v_bfe_u32 v26, v0, 3, 1')
    a('  v_lshlrev_b32 v26, 8, v26')
    a('  v_lshl_add_u32 v26, v25, 4, v26')
    a('  s_barrier')
    for j in range(4):
        a(f'  ds_read_b128 {vr(QF+4*j)}, v26 offset:{L_Q+64*j}')
    a(f'  v_mov_b32 v27, {L_TAG}')
    a(f'  ds_read_b32 {vTagV}, v27')
    a('  s_waitcnt lgkmcnt(0)')
    stamp('qready')

    rare = []
    NW = 8 * D - 4
    def tile(slot):
        kb = RING + slot * 32
        vb = kb + 16
        t = [f'v{T+i}' for i in range(4)]
        mx, tmp = f'v{T+4}', f'v{T+5}'
        pb = [f'v{T+6}', f'v{T+7}']
        a(f'  s_cmp_ge_u32 {sOff[slot]}, 0x200000')
        a('  s_cbranch_scc1 L_done')
        a(f'  s_waitcnt vmcnt({NW})')
        a('  s_mov_b64 exec, 1')
        a(f'  ds_add_rtn_u32 {vTick}, {vCnt}, {vInc}')
        a('  s_mov_b64 exec, -1')
        for j in range(4):
            c = '0' if j == 0 else vr(S)
            a(f'  v_mfma_f32_16x16x32_bf16 {vr(S)}, {vr(kb+4*j)}, {vr(QF+4*j)}, {c}')
        a('  s_waitcnt lgkmcnt(0)')
        a(f'  v_readfirstlane_b32 {sT0}, {vTick}')
        a(f'  s_and_b32 {sT1}, {sT0}, 0xffff8000')
        a(f'  s_add_u32 {sT0}, {sT0}, {sT1}')
        a(f'  s_or_b32 {sOff[slot]}, {sT0}, {sForce}')
        loadK(slot)
        a(f'  v_cvt_pk_bf16_f32 {t[0]}, v{S}, v{S+1}')
        a(f'  v_cvt_pk_bf16_f32 {t[2]}, v{S+2}, v{S+3}')
        def unpack():
            a(f'  v_and_b32 {t[1]}, 0xffff0000, {t[0]}')
            a(f'  v_lshlrev_b32 {t[0]}, 16, {t[0]}')
            a(f'  v_and_b32 {t[3]}, 0xffff0000, {t[2]}')
            a(f'  v_lshlrev_b32 {t[2]}, 16, {t[2]}')
        unpack()
        for i in range(4):
            a(f'  v_mul_f32 {t[i]}, {sScale}, {t[i]}')
        a(f'  v_cvt_pk_bf16_f32 {t[0]}, {t[0]}, {t[1]}')
        a(f'  v_cvt_pk_bf16_f32 {t[2]}, {t[2]}, {t[3]}')
        unpack()
        a(f'  v_max3_f32 {mx}, {t[0]}, {t[1]}, {t[2]}')
        a(f'  v_max_f32 {mx}, {mx}, {t[3]}')
        a(f'  v_cmp_gt_f32 vcc, {mx}, {vM}')
        a(f'  s_cbranch_vccnz L_rare{slot}')
        a(f'L_back{slot}:')
        for i in range(4):
            a(f'  v_fma_f32 {t[i]}, {t[i]}, {sLog2e}, {vNegM}')
        for i in range(4):
            a(f'  v_exp_f32 {t[i]}, {t[i]}')
        a(f'  v_cvt_pk_bf16_f32 {pb[0]}, {t[0]}, {t[1]}')
        a(f'  v_add_f32 {tmp}, {t[0]}, {t[1]}')
        a(f'  v_cvt_pk_bf16_f32 {pb[1]}, {t[2]}, {t[3]}')
        a(f'  v_add_f32 {mx}, {t[2]}, {t[3]}')
        for r in range(4):
            for d in range(4):
                a(f'  v_perm_b32 v{AF+4*r+d}, {pb[r//2]}, {pb[r//2]}, v{SEL+(r&1)*4+d}')
        a(f'  v_add_f32 {tmp}, {tmp}, {mx}')
        a(f'  v_add_f32 {vLs}, {vLs}, {tmp}')
        a(f'  s_waitcnt vmcnt({NW})')
        for r in range(4):
            a(f'  v_mfma_f32_16x16x32_bf16 {vr(O)}, {vr(AF+4*r)}, {vr(vb+4*r)}, {vr(O)}')
        loadV(slot)
        r_ = rare.append
        r_(f'L_rare{slot}:')
        for p in ['v_permlane32_swap_b32', 'v_permlane16_swap_b32']:
            r_(f'  v_mov_b32 {tmp}, {mx}')
            r_('  s_nop 1')
            r_(f'  {p} {tmp}, {mx}')
            r_(f'  v_max_f32 {mx}, {mx}, {tmp}')
        r_(f'  v_max_f32 {mx}, {mx}, {vM}')
        r_(f'  v_sub_f32 {tmp}, {vM}, {mx}')
        r_(f'  v_mul_f32 {tmp}, {sLog2e}, {tmp}')
        r_(f'  v_exp_f32 {tmp}, {tmp}')
        r_(f'  v_mov_b32 {vM}, {mx}')
        r_(f'  v_mul_f32 {vNegM}, {sNLog2e}, {mx}')
        r_(f'  v_mul_f32 {vLs}, {vLs}, {tmp}')
        r_(f'  v_mov_b32_dpp {mx}, {tmp} row_ror:8{DPPM}')
        r_(f'  v_cndmask_b32 {mx}, {mx}, {tmp}, {sSame}')
        for r in range(4):
            r_(f'  v_mul_f32 v{O+r}, v{O+r}, {mx}')
        r_(f'  s_branch L_back{slot}')
    a('.p2align 6')
    a('L_loop:')
    for d in range(D):
        tile(d)
    a('  s_branch L_loop')
    o += rare

    a('.p2align 6')
    a('L_helper:')
    a('  s_setprio 3')
    XA, XB, XF, WQ, GQ = 64, 74, 84, 104, 176
    vXC = 'v73'
    a('  v_bfe_u32 v26, v0, 3, 1')
    a('  v_mul_u32_u24 v26, 1152, v26')
    a('  v_and_b32 v28, 7, v0')
    a('  v_lshl_add_u32 v28, v25, 3, v28')
    a('  v_mad_u32_u24 v28, v28, 36, v26')
    a('  v_mad_u32_u24 v29, v25, 36, v26')
    a('  v_mul_u32_u24 v30, 0x24000, v25')
    a('  v_add_u32 v30, v30, v27')
    a('  v_lshlrev_b32 v31, 1, v0')
    sRG, sCG, sI16 = sU[0], sU[1], sU[2]
    a(f'  s_lshl_b32 {sI16}, {sB}, 3')
    a(f'  s_or_b32 {sI16}, {sI16}, {sC}')
    a(f'  s_lshr_b32 {sRG}, {sI16}, 1')
    a(f'  s_and_b32 {sCG}, {sI16}, 1')
    a(f'  s_mul_i32 {sT1}, {sRG}, 144')
    a(f'  s_mul_i32 {sT0}, {sRG}, {72*8192}')
    a(f'  s_lshl_b32 {sU[3]}, {sHKV}, 9')
    a(f'  s_add_u32 {sT0}, {sT0}, {sU[3]}')
    a(f'  s_lshl_b32 {sU[3]}, {sCG}, 8')
    a(f'  s_add_u32 {sT0}, {sT0}, {sU[3]}')
    a('  s_mov_b32 s46, 2304')
    a('  s_mov_b32 s47, 0x20000')
    a(f'  s_mov_b32 s50, {576*8192}')
    a('  s_mov_b32 s51, 0x20000')
    a('  s_waitcnt lgkmcnt(0)')
    a('  s_mov_b32 s44, s4')
    a('  s_and_b32 s45, s5, 0xffff')
    a('  s_mov_b32 s48, s10')
    a('  s_and_b32 s49, s11, 0xffff')
    a(f'  buffer_load_dwordx4 {vr(XA)}, v28, {X_}, 0 offen')
    a(f'  buffer_load_dwordx4 {vr(XA+4)}, v28, {X_}, 0 offen offset:16')
    a(f'  buffer_load_dword v{XA+8}, v28, {X_}, 0 offen offset:32')
    a(f'  buffer_load_dwordx4 {vr(XB)}, v29, {X_}, {sT1} offen')
    a(f'  buffer_load_dwordx4 {vr(XB+4)}, v29, {X_}, {sT1} offen offset:16')
    a(f'  buffer_load_dword v{XB+8}, v29, {X_}, {sT1} offen offset:32')
    for n in range(18):
        a(f'  buffer_load_dwordx4 {vr(WQ+4*n)}, v30, {WQ_}, {sT0} offen nt')
        if n < 17:
            a(f'  s_add_u32 {sT0}, {sT0}, 8192')
    a(f'  s_load_dword {sTag}, s[28:29], 0')
    a(f'  s_add_u32 {sU[4]}, s28, {EP2}')
    a(f'  s_addc_u32 {sU[5]}, s29, 0')
    a(f'  s_load_dword {sSpin}, s[84:85], 0')
    a(f'  s_load_dword {sB2}, s[22:23], 0')
    sFG, sOS = sU[6], sU[7]
    a(f'  s_mul_i32 {sFG}, {sIdx}, 57')
    a(f'  s_lshr_b32 {sFG}, {sFG}, 9')
    a(f'  s_mul_i32 {sT0}, {sFG}, 9')
    a(f'  s_sub_u32 {sOS}, {sIdx}, {sT0}')
    a(f'  s_min_u32 {sFG}, {sFG}, 11')
    a(f'  s_mul_i32 {sT0}, {sB}, 1152')
    a(f'  s_lshl_b32 {sT1}, {sOS}, 7')
    a(f'  s_add_u32 {sT0}, {sT0}, {sT1}')
    a(f'  buffer_load_ushort {vXC}, v31, {X_}, {sT0} offen')
    stamp('issued')
    consts()
    srd(52, 's12', 's13', 4096 * 1152)
    srd(60, 's24', 's25', 2304)
    a(f'  s_mov_b32 {sGC1}, {f32(GC1)}')
    selectors('v26', 'v27', 'v28', 'v29')
    def half_sum(v, t):
        for m in ['quad_perm:[1,0,3,2]', 'quad_perm:[2,3,0,1]', 'row_half_mirror']:
            a('  s_nop 1')
            a(f'  v_add_f32_dpp {v}, {v}, {v} {m}{DPPM}')
        for p in ['v_permlane16_swap_b32', 'v_permlane32_swap_b32']:
            a(f'  v_mov_b32 {t}, {v}')
            a('  s_nop 1')
            a(f'  {p} {t}, {v}')
            a(f'  v_add_f32 {v}, {v}, {t}')
    def ln_stats(mu, rd, t0, t1, t2):
        a(f'  v_add_f32 {t0}, v{XF}, v{XF+1}')
        a(f'  v_add_f32 {t1}, v{XF+2}, v{XF+3}')
        for k in range(4, 18, 2):
            a(f'  v_add_f32 {t0}, {t0}, v{XF+k}')
            a(f'  v_add_f32 {t1}, {t1}, v{XF+k+1}')
        a(f'  v_add_f32 {t0}, {t0}, {t1}')
        half_sum(t0, t1)
        a(f'  v_mul_f32 {mu}, {f32(1.0/576)}, {t0}')
        for k in range(18):
            tt = t1 if k & 1 else t2
            a(f'  v_sub_f32 {tt}, v{XF+k}, {mu}')
            if k == 0:
                a(f'  v_mul_f32 {t0}, {tt}, {tt}')
            else:
                a(f'  v_fmac_f32 {t0}, {tt}, {tt}')
        half_sum(t0, t1)
        a(f'  v_mul_f32 {t0}, {f32(1.0/576)}, {t0}')
        rnd(t0)
        a(f'  v_add_f32 {t0}, {f32(1e-5)}, {t0}')
        rnd(t0)
        a(f'  v_sqrt_f32 {t0}, {t0}')
        a('  s_nop 0')
        rnd(t0)
        a(f'  v_rcp_f32 {rd}, {t0}')
        rnd(mu)
    def norm_pair(lo, hi, dst, mu, rd):
        a(f'  v_sub_f32 {lo}, {lo}, {mu}')
        a(f'  v_sub_f32 {hi}, {hi}, {mu}')
        a(f'  v_cvt_pk_bf16_f32 {lo}, {lo}, {hi}')
        a(f'  v_and_b32 {hi}, 0xffff0000, {lo}')
        a(f'  v_lshlrev_b32 {lo}, 16, {lo}')
        a(f'  v_mul_f32 {lo}, {lo}, {rd}')
        a(f'  v_mul_f32 {hi}, {hi}, {rd}')
        a(f'  v_cvt_pk_bf16_f32 {dst}, {lo}, {hi}')
    a('  s_waitcnt vmcnt(22)')
    stamp('xarr')
    for k in range(9):
        a(f'  v_lshlrev_b32 v{XF+2*k}, 16, v{XA+k}')
        a(f'  v_and_b32 v{XF+2*k+1}, 0xffff0000, v{XA+k}')
    vMu, vRd = 'v32', 'v33'
    ln_stats(vMu, vRd, 'v34', 'v35', 'v36')
    a('  s_waitcnt vmcnt(19) lgkmcnt(0)')
    a(f'  s_mul_i32 {sTag}, {sTag}, 1664525')
    a(f'  s_add_u32 {sTag}, {sTag}, 1013904223')
    a(f'  s_mul_i32 {sSpin}, {sSpin}, 0x9e3779b4')
    a(f'  s_add_u32 {sTag}, {sTag}, {sSpin}')
    a(f'  v_mov_b32 {vTagV}, {sTag}')
    for k in range(9):
        r = XB + k
        a(f'  v_lshlrev_b32 v34, 16, v{r}')
        a(f'  v_and_b32 v35, 0xffff0000, v{r}')
        norm_pair('v34', 'v35', f'v{r}', vMu, vRd)
        for hh in range(2):
            n = 2 * k + hh
            af = 24 + hh * 4
            for d in range(4):
                a(f'  v_perm_b32 v{af+d}, v{r}, v{r}, v{SEL+hh*4+d}')
        for hh in range(2):
            n = 2 * k + hh
            af = 24 + hh * 4
            if hh == 0:
                a(f'  s_waitcnt vmcnt({17 - 2*k})')
                a('  s_nop 0')
            c = '0' if n == 0 else vr(16)
            a(f'  v_mfma_f32_16x16x32_bf16 {vr(16)}, {vr(af)}, {vr(WQ+4*n)}, {c}')
    a('  v_and_b32 v34, 15, v0')
    a('  v_lshlrev_b32 v34, 6, v34')
    a('  v_bfe_u32 v35, v0, 4, 1')
    a('  v_lshl_add_u32 v34, v35, 5, v34')
    a('  v_lshrrev_b32 v35, 5, v0')
    a('  v_lshl_add_u32 v34, v35, 10, v34')
    a(f'  s_lshl_b32 {sT0}, {sHKV}, 4')
    a(f'  s_add_u32 {sT1}, {sT0}, {sI16}')
    a(f'  s_lshl_b32 {sT1}, {sT1}, 11')
    a(f'  s_add_u32 {sT1}, {sT1}, {QBOX}')
    a(f'  v_mov_b32 v21, {sTag}')
    a(f'  v_mov_b32 v23, {sTag}')
    a('  v_mov_b32 v22, v19')
    a('  v_mov_b32 v20, v18')
    a('  v_mov_b32 v18, v17')
    a(f'  v_mov_b32 v17, {sTag}')
    a(f'  v_mov_b32 v19, {sTag}')
    a(f'  buffer_store_dwordx4 v[16:19], v34, {WS_}, {sT1} offen sc1')
    a(f'  buffer_store_dwordx4 v[20:23], v34, {WS_}, {sT1} offen offset:16 sc1')
    stamp('qpub')
    sMu1, sRd1 = sU[8], sU[9]
    a(f'  s_lshl_b32 {sU[3]}, {sB}, 3')
    a(f'  v_readlane_b32 {sMu1}, {vMu}, {sU[3]}')
    a(f'  v_readlane_b32 {sRd1}, {vRd}, {sU[3]}')
    for k in range(9):
        norm_pair(f'v{XF+2*k}', f'v{XF+2*k+1}', 'v34', vMu, vRd)
        a(f'  v_lshlrev_b32 v{XF+2*k}, 16, v34')
        a(f'  v_and_b32 v{XF+2*k+1}, 0xffff0000, v34')
    ln_stats(vMu, vRd, 'v34', 'v35', 'v36')
    vH = 'v37'
    a('  s_waitcnt vmcnt(2)')
    a(f'  v_lshlrev_b32 {vH}, 16, {vXC}')
    a(f'  v_subrev_f32 {vH}, {sMu1}, {vH}')
    rnd(vH)
    a(f'  v_mul_f32 {vH}, {sRd1}, {vH}')
    rnd(vH)
    a(f'  v_readlane_b32 {sMu1}, {vMu}, {sU[3]}')
    a(f'  v_readlane_b32 {sRd1}, {vRd}, {sU[3]}')
    a('  s_nop 1')
    a(f'  v_subrev_f32 {vH}, {sMu1}, {vH}')
    rnd(vH)
    a(f'  v_mul_f32 {vH}, {sRd1}, {vH}')
    rnd(vH)
    a('  v_and_b32 v34, 31, v0')
    a('  v_lshlrev_b32 v34, 5, v34')
    a('  v_lshrrev_b32 v35, 5, v0')
    a('  v_lshl_add_u32 v34, v35, 11, v34')
    a(f'  s_lshl_b32 {sT0}, {sHKV}, 15')
    a(f'  s_lshl_b32 {sT1}, {sB}, 10')
    a(f'  s_add_u32 {sT0}, {sT0}, {sT1}')
    a(f'  s_add_u32 {sT0}, {sT0}, {QBOX}')
    a(f'  s_mov_b32 {sSpin}, 0')
    def tagcheck(base, n, lbl_ok, lbl_retry, sl=1):
        tags = [f'v{base+2*k+1}' for k in range(2*n)]
        a(f'  v_max_u32 v35, {tags[0]}, {tags[1]}')
        a(f'  v_min_u32 v36, {tags[0]}, {tags[1]}')
        for k in range(2, 2*n, 2):
            a(f'  v_max3_u32 v35, v35, {tags[k]}, {tags[k+1]}')
            a(f'  v_min3_u32 v36, v36, {tags[k]}, {tags[k+1]}')
        a(f'  v_xor_b32 v35, v35, {vTagV}')
        a(f'  v_xor_b32 v36, v36, {vTagV}')
        a('  v_or_b32 v35, v35, v36')
        a('  v_cmp_ne_u32 vcc, 0, v35')
        a(f'  s_cbranch_vccz {lbl_ok}')
        a(f'  s_sleep {sl}')
        a(f'  s_add_u32 {sSpin}, {sSpin}, 1')
        a(f'  s_cmp_lt_u32 {sSpin}, 0x8000')
        a(f'  s_cbranch_scc1 {lbl_retry}')
    a('L_pollq:')
    a(f'  s_mov_b32 {sT1}, {sT0}')
    for k in range(8):
        a(f'  buffer_load_dwordx4 {vr(GQ+8*k)}, v34, {WS_}, {sT1} offen sc1')
        a(f'  buffer_load_dwordx4 {vr(GQ+8*k+4)}, v34, {WS_}, {sT1} offen offset:16 sc1')
        if k < 7:
            a(f'  s_add_u32 {sT1}, {sT1}, 4096')
    a('  s_waitcnt vmcnt(0)')
    tagcheck(GQ, 16, 'L_gotq', 'L_pollq', 4)
    a('L_gotq:')
    for k in range(1, 8):
        for r in range(4):
            a(f'  v_add_f32 v{GQ+2*r}, v{GQ+2*r}, v{GQ+8*k+2*r}')
    a(f'  v_cvt_pk_bf16_f32 v16, v{GQ}, v{GQ+2}')
    a(f'  v_cvt_pk_bf16_f32 v17, v{GQ+4}, v{GQ+6}')
    a('  v_lshlrev_b32 v34, 3, v0')
    a(f'  ds_write_b64 v34, v[16:17] offset:{L_Q}')
    a(f'  v_mov_b32 v34, {L_TAG}')
    a(f'  v_mov_b32 v35, {(7*D)<<12}')
    a(f'  ds_write_b32 v34, {vTagV}')
    a(f'  ds_write_b32 v34, v35 offset:{L_CNT-L_TAG}')
    a('  s_waitcnt lgkmcnt(0)')
    a('  s_barrier')
    stamp('qready')
    a('  s_setprio 0')
    vWOoff, vBacc, vGC0 = 'v38', 'v39', 'v40'
    a(f'  v_mul_u32_u24 v34, 57, v0')
    a(f'  v_lshrrev_b32 v34, 9, v34')
    a(f'  v_mul_u32_u24 v35, 9, v34')
    a(f'  v_sub_u32 v35, v0, v35')
    a(f'  v_lshlrev_b32 v35, 4, v35')
    a(f'  v_mul_u32_u24 {vWOoff}, 1152, v34')
    a(f'  v_add_u32 {vWOoff}, {vWOoff}, v35')
    a(f'  v_mov_b32 {vBacc}, 0')
    a(f'  v_mov_b32 {vGC0}, {f32(GC0)}')
    sBo, sWOoff, sM0, sCnt = 's36', 's37', 's38', 's39'
    a(f'  s_mul_i32 {sBo}, {sFG}, 768')
    a(f'  s_mul_i32 {sWOoff}, {sHKV}, {256*1152}')
    a(f'  s_mul_i32 {sT1}, {sC}, 144')
    a(f'  s_add_u32 {sWOoff}, {sWOoff}, {sT1}')
    a(f'  s_mov_b32 {sM0}, {L_WO}')
    a(f'  s_mov_b32 {sCnt}, 0')
    a('L_bloop:')
    a(f'  s_load_dwordx4 s[80:83], s[16:17], {sBo}')
    a(f'  s_load_dwordx4 s[84:87], s[18:19], {sBo}')
    a(f'  s_load_dwordx4 s[88:91], s[20:21], {sBo}')
    a(f'  s_cmp_ge_u32 {sCnt}, 37')
    a('  s_cbranch_scc1 L_nodma')
    a(f'  s_mov_b32 m0, {sM0}')
    a(f'  s_add_u32 {sM0}, {sM0}, 1008')
    a(f'  buffer_load_dwordx4 {vWOoff}, {WO_}, {sWOoff} offen lds')
    a(f'  s_add_u32 {sWOoff}, {sWOoff}, {7*1152}')
    a('L_nodma:')
    a('  s_waitcnt lgkmcnt(0)')
    for k in range(4):
        x0, x1, y0, y1, pk = 'v42', 'v43', 'v44', 'v45', 'v46'
        a(f'  s_lshl_b32 s64, s{80+k}, 16')
        a(f'  s_and_b32 s65, s{80+k}, 0xffff0000')
        a(f'  s_lshl_b32 s66, s{84+k}, 16')
        a(f'  s_and_b32 s67, s{84+k}, 0xffff0000')
        a(f'  s_lshl_b32 s68, s{88+k}, 16')
        a(f'  s_and_b32 s69, s{88+k}, 0xffff0000')
        a(f'  v_mul_f32 {x0}, s64, {vH}')
        a(f'  v_mul_f32 {x1}, s65, {vH}')
        a(f'  v_cvt_pk_bf16_f32 {pk}, {x0}, {x1}')
        a(f'  v_lshlrev_b32 {x0}, 16, {pk}')
        a(f'  v_and_b32 {x1}, 0xffff0000, {pk}')
        a(f'  v_add_f32 {x0}, s66, {x0}')
        a(f'  v_add_f32 {x1}, s67, {x1}')
        a(f'  v_cvt_pk_bf16_f32 {pk}, {x0}, {x1}')
        a(f'  v_lshlrev_b32 {x0}, 16, {pk}')
        a(f'  v_and_b32 {x1}, 0xffff0000, {pk}')
        a(f'  v_mul_f32 {y0}, {x0}, {x0}')
        a(f'  v_mul_f32 {y1}, {x1}, {x1}')
        a(f'  v_fma_f32 {y0}, {y0}, {sGC1}, {vGC0}')
        a(f'  v_fma_f32 {y1}, {y1}, {sGC1}, {vGC0}')
        a(f'  v_mul_f32 {y0}, {y0}, {x0}')
        a(f'  v_mul_f32 {y1}, {y1}, {x1}')
        a(f'  v_exp_f32 {y0}, {y0}')
        a(f'  v_exp_f32 {y1}, {y1}')
        a(f'  v_add_f32 {y0}, 1.0, {y0}')
        a(f'  v_add_f32 {y1}, 1.0, {y1}')
        a(f'  v_rcp_f32 {y0}, {y0}')
        a(f'  v_rcp_f32 {y1}, {y1}')
        a(f'  v_mul_f32 {y0}, {y0}, {x0}')
        a(f'  v_mul_f32 {y1}, {y1}, {x1}')
        a(f'  v_cvt_pk_bf16_f32 {pk}, {y0}, {y1}')
        a(f'  v_lshlrev_b32 {x0}, 16, {pk}')
        a(f'  v_and_b32 {x1}, 0xffff0000, {pk}')
        a(f'  v_fmac_f32 {vBacc}, s68, {x0}')
        a(f'  v_fmac_f32 {vBacc}, s69, {x1}')
    a(f'  s_add_u32 {sBo}, {sBo}, 16')
    a(f'  s_add_u32 {sCnt}, {sCnt}, 1')
    a(f'  s_cmp_lt_u32 {sCnt}, 48')
    a('  s_cbranch_scc1 L_bloop')
    a(f'  s_lshl_b32 {sT1}, {sL}, 12')
    a(f'  s_add_u32 {sT1}, {sT1}, {BLK}')
    a(f'  s_cmp_ge_u32 {sIdx}, 108')
    a('  s_cbranch_scc1 L_nobst')
    a(f'  v_mov_b32 v42, {vBacc}')
    a(f'  v_mov_b32 v43, {vTagV}')
    a('  v_lshlrev_b32 v34, 3, v0')
    a(f'  buffer_store_dwordx2 v[42:43], v34, {WS_}, {sT1} offen offset:{B_B} sc1')
    a('L_nobst:')
    stamp('bdone')
    a(f'  s_lshl_b32 {sT0}, {sC}, 1')
    a(f'  s_add_u32 {sT0}, {sT0}, {sB}')
    a(f'  s_cmp_lg_u32 {sT0}, {sHKV}')
    a('  s_cbranch_scc1 L_hwait')
    a(f'  s_mul_i32 {sT0}, {sC}, 72')
    a(f'  v_lshl_add_u32 v34, v0, 1, {sT0}')
    a('  v_lshrrev_b32 v42, 6, v34')
    a('  v_lshlrev_b32 v42, 12, v42')
    a('  v_and_b32 v43, 63, v34')
    a('  v_lshl_add_u32 v42, v43, 3, v42')
    a('  v_lshlrev_b32 v51, 1, v34')
    a(f'  s_mul_i32 {sT1}, {sB}, 1152')
    a(f'  v_add_u32 v51, {sT1}, v51')
    a(f'  s_lshl_b32 {sT0}, {sB}, 19')
    a(f'  s_add_u32 {sT0}, {sT0}, {BLK}')
    a('  s_mov_b32 exec_lo, -1')
    a('  s_mov_b32 exec_hi, 0xf')
    a(f'  buffer_load_dword v50, v51, {X_}, 0 offen')
    a(f'  s_mov_b32 {sSpin}, 0')
    a('L_pollb:')
    a(f'  s_mov_b32 {sT1}, {sT0}')
    for k in range(12):
        a(f'  buffer_load_dwordx4 {vr(GQ+4*k)}, v42, {WS_}, {sT1} offen offset:{B_B} sc1')
        if k < 11:
            a(f'  s_add_u32 {sT1}, {sT1}, {9*4096}')
    a('  s_waitcnt vmcnt(0)')
    tagcheck(GQ, 12, 'L_gotb', 'L_pollb', 64)
    a('L_gotb:')
    for k in range(1, 12):
        a(f'  v_add_f32 v{GQ}, v{GQ}, v{GQ+4*k}')
        a(f'  v_add_f32 v{GQ+2}, v{GQ+2}, v{GQ+4*k+2}')
    a(f'  s_lshl_b32 {sB2}, {sB2}, 16')
    a(f'  v_cvt_pk_bf16_f32 v34, v{GQ}, v{GQ+2}')
    a('  v_lshlrev_b32 v48, 16, v34')
    a('  v_and_b32 v49, 0xffff0000, v34')
    a(f'  v_add_f32 v48, {sB2}, v48')
    a(f'  v_add_f32 v49, {sB2}, v49')
    a('  v_cvt_pk_bf16_f32 v34, v48, v49')
    a('  v_lshlrev_b32 v48, 16, v34')
    a('  v_and_b32 v49, 0xffff0000, v34')
    a('  s_mov_b64 exec, -1')
    a('L_hwait:')
    a('  s_waitcnt vmcnt(0)')
    a('  s_branch L_tail')

    a('.p2align 6')
    a('L_done:')
    stamp('loopend')
    tmp = f'v{T}'
    for p in ['v_permlane32_swap_b32', 'v_permlane16_swap_b32']:
        a(f'  v_mov_b32 {tmp}, {vLs}')
        a('  s_nop 1')
        a(f'  {p} {tmp}, {vLs}')
        a(f'  v_add_f32 {vLs}, {vLs}, {tmp}')
    a('  v_and_b32 v24, 15, v0')
    a('  v_lshlrev_b32 v24, 5, v24')
    a('  v_bfe_u32 v25, v0, 4, 1')
    a('  v_lshl_add_u32 v24, v25, 4, v24')
    a('  v_lshrrev_b32 v25, 5, v0')
    a('  v_lshl_add_u32 v24, v25, 9, v24')
    a(f'  s_lshl_b32 {sT0}, {sW}, 10')
    a(f'  v_add_u32 v24, {sT0}, v24')
    a(f'  ds_write_b128 v24, {vr(O)} offset:{L_OP}')
    a('  v_bfe_u32 v24, v0, 3, 1')
    a('  v_lshlrev_b32 v24, 6, v24')
    a(f'  s_lshl_b32 {sT0}, {sW}, 3')
    a(f'  v_add_u32 v24, {sT0}, v24')
    a(f'  v_mov_b32 v26, {vM}')
    a(f'  v_mov_b32 v27, {vLs}')
    a('  s_mov_b64 exec, 0x101')
    a(f'  ds_write_b64 v24, v[26:27] offset:{L_ML}')
    a('  s_mov_b64 exec, -1')
    a('  s_waitcnt vmcnt(0) lgkmcnt(0)')

    E, WOF = 64, 128
    a('L_tail:')
    a('  s_barrier')
    a(f'  s_lshl_b32 {sT1}, {sL}, 12')
    a(f'  s_add_u32 {sT1}, {sT1}, {BLK}')
    a(f'  s_cmp_lg_u32 {sW}, 0')
    a('  s_cbranch_scc1 L_nomerge')
    a('  v_lshrrev_b32 v24, 5, v0')
    a('  v_lshlrev_b32 v24, 6, v24')
    ML = E + 32
    for k in range(4):
        a(f'  ds_read_b128 {vr(ML+4*k)}, v24 offset:{L_ML+16*k}')
    for k in range(1, 8):
        a(f'  ds_read_b128 {vr(E+4*k)}, {vL16} offset:{L_OP+1024*k}')
    a('  v_lshlrev_b32 v25, 5, v0')
    a(f'  v_mov_b32 v29, {vTagV}')
    a(f'  v_mov_b32 v31, {vTagV}')
    a(f'  v_mov_b32 v33, {vTagV}')
    a(f'  v_mov_b32 v35, {vTagV}')
    a(f'  v_mov_b32 v37, {vTagV}')
    a(f'  v_mov_b32 v39, {vTagV}')
    a('  s_waitcnt lgkmcnt(7)')
    a(f'  v_max3_f32 v36, v{ML+2}, v{ML+4}, v{ML+6}')
    a(f'  v_max3_f32 v36, v36, v{ML+8}, v{ML+10}')
    a(f'  v_max3_f32 v36, v36, v{ML+12}, v{ML+14}')
    a(f'  v_mul_f32 v26, {sNLog2e}, v36')
    for k in range(1, 8):
        a(f'  v_fma_f32 v{ML+2*k}, v{ML+2*k}, {sLog2e}, v26')
    for k in range(1, 8):
        a(f'  v_exp_f32 v{ML+2*k}, v{ML+2*k}')
    a(f'  v_mul_f32 v38, v{ML+2}, v{ML+3}')
    for k in range(2, 8):
        a(f'  v_fmac_f32 v38, v{ML+2*k}, v{ML+2*k+1}')
    a('  s_waitcnt lgkmcnt(0)')
    for r in range(4):
        a(f'  v_mul_f32 v{28+2*r}, v{ML+2}, v{E+4+r}')
    for k in range(2, 8):
        for r in range(4):
            a(f'  v_fmac_f32 v{28+2*r}, v{ML+2*k}, v{E+4*k+r}')
    a(f'  buffer_store_dwordx4 v[28:31], v25, {WS_}, {sT1} offen sc1')
    a(f'  buffer_store_dwordx4 v[32:35], v25, {WS_}, {sT1} offen offset:16 sc1')
    a('  v_lshrrev_b32 v24, 2, v24')
    a('  s_mov_b32 exec_lo, 1')
    a('  s_mov_b32 exec_hi, 1')
    a(f'  buffer_store_dwordx4 v[36:39], v24, {WS_}, {sT1} offen offset:{B_ML} sc1')
    a('  s_mov_b64 exec, -1')
    a('L_nomerge:')
    stamp('pub1')
    a('  v_lshrrev_b32 v24, 4, v0')
    a('  v_mul_u32_u24 v24, 1152, v24')
    a('  v_bfe_u32 v25, v0, 2, 2')
    a('  v_mul_u32_u24 v25, 144, v25')
    a('  v_and_b32 v26, 3, v0')
    a('  v_lshlrev_b32 v26, 3, v26')
    a('  v_add3_u32 v24, v24, v25, v26')
    a(f'  s_mul_i32 {sT0}, {sW}, 4608')
    a(f'  v_add_u32 v24, {sT0}, v24')
    for ct in range(5):
        a(f'  ds_read_b64_tr_b16 {vr(WOF+4*ct,2)}, v24 offset:{L_WO+ct*32}')
        a(f'  ds_read_b64_tr_b16 {vr(WOF+4*ct+2,2)}, v24 offset:{L_WO+ct*32+4*144}')
    a('  v_and_b32 v25, 7, v0')
    a('  v_lshlrev_b32 v25, 12, v25')
    a('  v_lshrrev_b32 v26, 3, v0')
    a('  v_lshl_add_u32 v26, v26, 5, v25')
    a(f'  s_and_b32 {sT0}, {sT1}, 0xffff8000')
    a(f'  s_lshl_b32 s64, {sW}, 8')
    a(f'  s_add_u32 s64, s64, {sT0}')
    a(f'  s_lshr_b32 s65, {sW}, 2')
    a('  s_lshl_b32 s65, s65, 4')
    a(f'  s_add_u32 s65, s65, {sT0}')
    a(f'  s_mov_b32 {sSpin}, 0')
    a('L_poll1:')
    a(f'  buffer_load_dwordx4 {vr(E)}, v26, {WS_}, s64 offen sc1')
    a(f'  buffer_load_dwordx4 {vr(E+4)}, v26, {WS_}, s64 offen offset:16 sc1')
    a(f'  buffer_load_dwordx4 {vr(E+8)}, v25, {WS_}, s65 offen offset:{B_ML} sc1')
    a('  s_waitcnt vmcnt(0)')
    tagcheck(E, 3, 'L_got1', 'L_poll1', 1)
    a('L_got1:')
    stamp('hop1')
    R8 = ['quad_perm:[1,0,3,2]', 'quad_perm:[2,3,0,1]', 'row_half_mirror']
    vm, vl = f'v{E+8}', f'v{E+10}'
    od = [f'v{E+2*r}' for r in range(4)]
    a(f'  v_mov_b32 v34, {vm}')
    for m in R8:
        a('  s_nop 1')
        a(f'  v_max_f32_dpp v34, v34, v34 {m}{DPPM}')
    a(f'  v_sub_f32 {vm}, {vm}, v34')
    a(f'  v_mul_f32 {vm}, {sLog2e}, {vm}')
    a(f'  v_exp_f32 {vm}, {vm}')
    a('  s_nop 0')
    a(f'  v_mul_f32 {vl}, {vl}, {vm}')
    for r in range(4):
        a(f'  v_mul_f32 {od[r]}, {od[r]}, {vm}')
    for m in R8:
        a(f'  v_add_f32_dpp {vl}, {vl}, {vl} {m}{DPPM}')
        for r in range(4):
            a(f'  v_add_f32_dpp {od[r]}, {od[r]}, {od[r]} {m}{DPPM}')
    a(f'  v_rcp_f32 {vl}, {vl}')
    a('  s_nop 0')
    for r in range(4):
        a(f'  v_mul_f32 {od[r]}, {od[r]}, {vl}')
    a(f'  v_cvt_pk_bf16_f32 v40, {od[0]}, {od[1]}')
    a(f'  v_cvt_pk_bf16_f32 v41, {od[2]}, {od[3]}')
    a('  s_nop 1')
    a(f'  v_mov_b32_dpp v42, v40 row_ror:8{DPPM}')
    a(f'  v_mov_b32_dpp v43, v41 row_ror:8{DPPM}')
    a(f'  s_mul_i32 {sT0}, {sW}, 320')
    a('  v_lshlrev_b32 v44, 2, v0')
    a(f'  v_add_u32 v44, {sT0}, v44')
    a('  s_waitcnt lgkmcnt(0)')
    for ct in range(5):
        a(f'  v_mfma_f32_16x16x32_bf16 {vr(E+16+4*ct)}, v[40:43], {vr(WOF+4*ct)}, 0')
    a('  s_mov_b64 exec, 0xffff')
    a('  s_nop 7')
    for ct in range(5):
        a(f'  ds_write_b32 v44, v{E+16+4*ct} offset:{L_Y+64*ct}')
    a('  s_mov_b64 exec, -1')
    a('  s_waitcnt lgkmcnt(0)')
    a('  s_barrier')
    a(f'  s_cmp_lg_u32 {sW}, 0')
    a('  s_cbranch_scc1 L_fin')
    a('  v_lshlrev_b32 v24, 3, v0')
    a('  s_mov_b32 exec_hi, 0xf')
    for k in range(8):
        a(f'  ds_read_b64 {vr(E+2*k,2)}, v24 offset:{L_Y+320*k}')
    a(f'  v_mov_b32 v29, {vTagV}')
    a(f'  v_mov_b32 v31, {vTagV}')
    a('  s_waitcnt lgkmcnt(6)')
    a(f'  v_add_f32 v28, v{E}, v{E+2}')
    a(f'  v_add_f32 v30, v{E+1}, v{E+3}')
    for k in range(2, 8):
        a(f'  s_waitcnt lgkmcnt({7-k})')
        a(f'  v_add_f32 v28, v28, v{E+2*k}')
        a(f'  v_add_f32 v30, v30, v{E+2*k+1}')
    a(f'  buffer_store_dwordx4 v[28:31], {vL16}, {WS_}, {sT1} offen offset:{B_Y} sc1')
    a(f'  s_lshl_b32 {sT0}, {sC}, 1')
    a(f'  s_add_u32 {sT0}, {sT0}, {sB}')
    a(f'  s_cmp_lg_u32 {sT0}, {sHKV}')
    a('  s_cbranch_scc1 L_fin')
    srd(60, 's24', 's25', 2304)
    a(f'  s_mul_i32 {sT0}, {sC}, 144')
    a(f'  s_mul_i32 {sT1}, {sB}, 1152')
    a(f'  s_add_u32 {sT0}, {sT0}, {sT1}')
    a(f'  v_lshl_add_u32 v51, v0, 2, {sT0}')
    a(f'  s_lshl_b32 {sT0}, {sB}, 7')
    a(f'  s_add_u32 {sT0}, {sT0}, {sC}')
    a(f'  s_lshl_b32 {sT0}, {sT0}, 12')
    a(f'  s_add_u32 {sT0}, {sT0}, {BLK}')
    a(f'  s_mov_b32 {sSpin}, 0')
    a('L_poll2:')
    a(f'  s_mov_b32 {sT1}, {sT0}')
    for k in range(16):
        a(f'  buffer_load_dwordx4 {vr(E+4*k)}, {vL16}, {WS_}, {sT1} offen offset:{B_Y} sc1')
        if k < 15:
            a(f'  s_add_u32 {sT1}, {sT1}, 0x8000')
    a('  s_waitcnt vmcnt(0)')
    tagcheck(E, 16, 'L_got2', 'L_poll2', 1)
    a('L_got2:')
    for k in range(1, 16):
        a(f'  v_add_f32 v{E}, v{E}, v{E+4*k}')
        a(f'  v_add_f32 v{E+2}, v{E+2}, v{E+4*k+2}')
    a(f'  v_cvt_pk_bf16_f32 v30, v{E}, v{E+2}')
    a('  v_lshlrev_b32 v28, 16, v30')
    a('  v_and_b32 v29, 0xffff0000, v30')
    a('  v_lshlrev_b32 v32, 16, v50')
    a('  v_and_b32 v33, 0xffff0000, v50')
    a('  v_add_f32 v28, v28, v32')
    a('  v_add_f32 v29, v29, v33')
    a('  v_cvt_pk_bf16_f32 v30, v28, v29')
    a('  v_lshlrev_b32 v28, 16, v30')
    a('  v_and_b32 v29, 0xffff0000, v30')
    a('  v_add_f32 v28, v28, v48')
    a('  v_add_f32 v29, v29, v49')
    a('  v_cvt_pk_bf16_f32 v30, v28, v29')
    a(f'  buffer_store_dword v30, v51, {OUT_}, 0 offen')
    a(f'  s_cmp_lg_u32 {sL}, 0')
    a('  s_cbranch_scc1 L_fin')
    a('  s_mov_b64 exec, 1')
    a(f'  s_mov_b32 {sT0}, {EP2}')
    a(f'  buffer_store_dword {vTagV}, off, {WS_}, 0')
    a(f'  buffer_store_dword {vTagV}, off, {WS_}, {sT0}')
    a('L_fin:')
    if ts:
        a('  s_waitcnt vmcnt(0)')
        a('  s_memrealtime s[64:65]')
        a('  s_waitcnt lgkmcnt(0)')
        for i in range(8):
            a(f'  v_mov_b32 v{24+i}, s{sTs+i}')
        a('  v_mov_b32 v32, s64')
        a('  v_mov_b32 v33, s65')
        a('  s_lshl_b32 s66, s2, 3')
        a(f'  s_add_u32 s66, s66, {sW}')
        a('  s_lshl_b32 s66, s66, 6')
        a(f'  s_add_u32 s66, s66, {TS_OFF}')
        a('  v_mov_b32 v1, s66')
        a('  s_mov_b64 exec, 1')
        a('  global_store_dwordx4 v1, v[24:27], s[28:29]')
        a('  global_store_dwordx4 v1, v[28:31], s[28:29] offset:16')
        a('  global_store_dwordx2 v1, v[32:33], s[28:29] offset:32')
    a('L_end:')
    a('  s_endpgm')
    body = '\n'.join(o)
    txt = HEADER + f'''; @launch grid=(256,1,1) block=(512,1,1) lds={LDS_BYTES}
.amdgcn_target "amdgcn-amd-amdhsa--gfx950"
.text
.globl {KNAME}
.p2align 8
.type {KNAME},@function
{body}
.section .rodata,"a"
.p2align 6
.amdhsa_kernel {KNAME}
  .amdhsa_next_free_vgpr 256
  .amdhsa_next_free_sgpr 102
  .amdhsa_accum_offset 256
  .amdhsa_group_segment_fixed_size 0
  .amdhsa_kernarg_size 104
  .amdhsa_user_sgpr_count 2
  .amdhsa_user_sgpr_kernarg_segment_ptr 1
  .amdhsa_system_sgpr_workgroup_id_x 1
  .amdhsa_float_denorm_mode_32 3
.end_amdhsa_kernel
'''
    return txt

if __name__ == '__main__':
    out = sys.argv[1]
    ts = 'ts' in sys.argv[2:]
    kw = {}
    for x in sys.argv[2:]:
        if x.startswith('ev='):
            ts = {n: i for i, n in enumerate(x[3:].split(','))}
        elif '=' in x:
            k, v = x.split('='); kw[k] = int(v)
    open(out, 'w').write(gen(ts=ts, exp=sys.argv[2:], **kw))
    print('lds', LDS_BYTES)
```

```python
import sys, struct, math

NAME = 'parallel_sum__gqa_block_cached__mixer_token_mlp__decode'
KNAME = NAME + '_kernel'

def f32(x):
    return '0x%08x' % struct.unpack('<I', struct.pack('<f', x))[0]

LOG2E = 1.4426950408889634
SCALE = 128 ** -0.5
K0 = math.sqrt(2.0 / math.pi)
GC0 = -2.0 * LOG2E * K0
GC1 = GC0 * 0.044715

HEADER = open('cdna_kernels/%s.s.ref' % NAME).read().split('; Override launch geometry')[0]

L_Q = 0
L_TAG = 512
L_CNT = 576
L_FLAG = 640
L_WGT = 768
L_ML = 1024
L_Y = 1280
L_OP = 4096
L_WO = 12288
LDS_BYTES = 12288 + 37 * 1008 + 64
LDS_BYTES = (LDS_BYTES + 255) // 256 * 256

QBOX = 4096
BLK = 2 << 20
B_O, B_ML, B_Y, B_B = 0, 2048, 2304, 3072
GML = BLK + 256 * 4096
EP2 = GML + 32 * 256
WS_BYTES = EP2 + 256
TS_OFF = 1 << 20

def gen(ts=False, exp=(), D=3, NSTREAM=2, HFIRST=1, THR=1, SL1=4, NB1=5, DMA0=8, BG=200):
    o = []
    a = o.append
    DPPM = ' row_mask:0xf bank_mask:0xf'
    sW = 's3'
    sHKV, sB, sC, sL = 's30', 's31', 's32', 's33'
    sT0, sT1 = 's34', 's35'
    K_, V_, X_, WQ_, WO_, WS_, OUT_ = [f's[{i}:{i+3}]' for i in range(36, 64, 4)]
    def srd(base, lo, hi, nrec):
        a(f'  s_mov_b32 s{base}, {lo}')
        a(f'  s_and_b32 s{base+1}, {hi}, 0xffff')
        a(f'  s_mov_b32 s{base+2}, {nrec}')
        a(f'  s_mov_b32 s{base+3}, 0x20000')
    sOff = [f's{64+i}' for i in range(6)]
    sScale, sLog2e, sNLog2e, sGC1 = 's70', 's71', 's72', 's73'
    sSame = 's[74:75]'
    sTag, sIdx, sSpin, sB2 = 's76', 's77', 's78', 's79'
    sU = [f's{80+i}' for i in range(14)]
    sForce = 's80'
    sTs = 94
    vKoff, vVoff, vTick, vCnt = 'v1', 'v2', 'v3', 'v4'
    SEL = 5
    vM, vNegM, vLs = 'v13', 'v14', 'v15'
    O, S, AF, T, QF, RING = 16, 20, 24, 40, 48, 64
    vInc = 'v255'
    vTagV = 'v254'
    vL16 = 'v253'
    assert D <= 5
    def vr(b, n=4): return f'v[{b}:{b+n-1}]'
    EV = {'start': 0, 'qready': 1, 'loopend': 2, 'hop1': 3}
    if isinstance(ts, dict): EV = ts
    def stamp(name):
        if ts and name in EV:
            i = EV[name]
            a(f'  s_memrealtime s[{sTs+2*i}:{sTs+2*i+1}]')
    def rnd(v):
        a(f'  v_cvt_pk_bf16_f32 {v}, {v}, {v}')
        a(f'  v_and_b32 {v}, 0xffff0000, {v}')
    def selectors(t0, t1, t2, t3):
        a(f'  v_and_b32 {t0}, 1, v0')
        a(f'  v_cmp_eq_u32 vcc, 1, {t0}')
        a(f'  v_mov_b32 {t0}, 0x0c0c0100')
        a(f'  v_mov_b32 {t1}, 0x01000c0c')
        a(f'  v_cndmask_b32 {t0}, {t0}, {t1}, vcc')
        a(f'  v_mov_b32 {t1}, 0x0c0c0302')
        a(f'  v_mov_b32 {t2}, 0x03020c0c')
        a(f'  v_cndmask_b32 {t1}, {t1}, {t2}, vcc')
        a(f'  v_bfe_u32 {t2}, v0, 1, 2')
        a(f'  v_mov_b32 {t3}, 0x0c0c0c0c')
        for d in range(4):
            a(f'  v_cmp_eq_u32 vcc, {d}, {t2}')
            a(f'  s_nop 1')
            a(f'  v_cndmask_b32 v{SEL+d}, {t3}, {t0}, vcc')
            a(f'  v_cndmask_b32 v{SEL+4+d}, {t3}, {t1}, vcc')
    def consts():
        srd(56, 's28', 's29', WS_BYTES)
        a(f'  s_mov_b32 {sLog2e}, {f32(LOG2E)}')
        a(f'  s_mov_b32 {sNLog2e}, {f32(-LOG2E)}')
        a(f'  v_lshlrev_b32 {vL16}, 4, v0')

    a(f'{KNAME}:')
    a('  s_cmp_ge_u32 s2, 256')
    a('  s_cbranch_scc1 L_end')
    a('  s_load_dwordx16 s[4:19], s[0:1], 0')
    a('  s_load_dwordx8 s[20:27], s[0:1], 64')
    a('  s_load_dwordx2 s[28:29], s[0:1], 96')
    if ts:
        for i in range(8):
            a(f'  s_mov_b32 s{sTs+i}, 0')
    stamp('start')
    a('  v_lshrrev_b32 v1, 6, v0')
    a('  v_and_b32 v0, 63, v0')
    a(f'  v_readfirstlane_b32 {sW}, v1')
    a(f'  s_and_b32 {sHKV}, s2, 7')
    a(f'  s_lshl_b32 {sHKV}, {sHKV}, 1')
    a(f'  s_bfe_u32 {sT0}, s2, 0x10003')
    a(f'  s_or_b32 {sHKV}, {sHKV}, {sT0}')
    a(f'  s_bfe_u32 {sB}, s2, 0x10004')
    a(f'  s_lshr_b32 {sC}, s2, 5')
    a(f'  s_lshl_b32 {sIdx}, {sHKV}, 3')
    a(f'  s_or_b32 {sIdx}, {sIdx}, {sC}')
    a(f'  s_lshl_b32 {sL}, {sB}, 7')
    a(f'  s_or_b32 {sL}, {sL}, {sIdx}')
    a('  v_and_b32 v24, 15, v0')
    a('  v_lshrrev_b32 v25, 4, v0')
    a('  v_lshlrev_b32 v27, 4, v24')
    a(f'  s_cmp_eq_u32 {sW}, 0')
    a('  s_cbranch_scc1 L_helper')

    a('  v_and_b32 v26, 7, v0')
    a('  v_lshlrev_b32 v26, 8, v26')
    a('  v_lshl_add_u32 v26, v25, 4, v26')
    a('  v_bfe_u32 v28, v0, 3, 1')
    a(f'  v_lshl_add_u32 {vKoff}, v28, 15, v26')
    a('  v_bfe_u32 v28, v0, 4, 1')
    a('  v_lshl_add_u32 v26, v28, 10, v27')
    a('  v_lshrrev_b32 v28, 5, v0')
    a(f'  v_lshl_add_u32 {vVoff}, v28, 15, v26')
    a(f'  s_lshl_b32 {sT0}, {sL}, 20')
    a('  s_mov_b32 s38, 0x100000')
    a('  s_mov_b32 s42, s38')
    a('  s_mov_b32 s39, 0x20000')
    a('  s_mov_b32 s43, 0x20000')
    a(f'  s_cmp_le_u32 {sW}, 4')
    a(f'  s_cselect_b32 {sU[1]}, 4, 3')
    a(f'  s_cselect_b32 {sU[2]}, -1, {4*D-5}')
    a(f'  s_lshl_b32 {sU[1]}, {sU[1]}, 11')
    a(f'  s_add_u32 {sU[2]}, {sU[2]}, {sW}')
    a(f'  s_lshl_b32 {sU[2]}, {sU[2]}, 11')
    a(f'  s_and_b32 {sForce}, {sHKV}, 1')
    a(f'  s_lshl_b32 {sForce}, {sForce}, 14')
    for d in range(D):
        a(f'  s_and_b32 {sT1}, {sU[2]}, 0xffff8000')
        a(f'  s_add_u32 {sOff[d]}, {sU[2]}, {sT1}')
        a(f'  s_xor_b32 {sOff[d]}, {sOff[d]}, {sForce}')
        if d < D - 1:
            a(f'  s_add_u32 {sU[2]}, {sU[2]}, {sU[1]}')
    a('  s_waitcnt lgkmcnt(0)')
    a(f'  s_add_u32 s36, s6, {sT0}')
    a('  s_addc_u32 s37, s7, 0')
    a('  s_and_b32 s37, s37, 0xffff')
    a(f'  s_add_u32 s40, s8, {sT0}')
    a('  s_addc_u32 s41, s9, 0')
    a('  s_and_b32 s41, s41, 0xffff')
    def loadK(slot):
        for n in range(4):
            a(f'  buffer_load_dwordx4 {vr(RING+slot*32+n*4)}, {vKoff}, {K_}, {sOff[slot]} offen offset:{n*64} nt')
    def loadV(slot):
        for n in range(4):
            a(f'  buffer_load_dwordx4 {vr(RING+slot*32+16+n*4)}, {vVoff}, {V_}, {sOff[slot]} offen offset:{n*256} nt')
    if HFIRST:
        a('  s_barrier')
    for d in range(D):
        if THR is not None and d > 0:
            a(f'  s_waitcnt vmcnt({THR})')
        loadK(d)
        if THR is not None:
            a(f'  s_waitcnt vmcnt({THR})')
        loadV(d)
    stamp('issued')
    consts()
    a(f'  s_mov_b32 {sScale}, {f32(SCALE)}')
    a('  s_mov_b32 s74, 0x00ff00ff')
    a('  s_mov_b32 s75, 0xff00ff00')
    selectors('v26', 'v27', 'v28', 'v29')
    a(f'  s_cmp_le_u32 {sW}, {NSTREAM}')
    a(f'  s_cselect_b32 {sT0}, 2048, 0')
    a(f'  s_cselect_b32 {sT1}, 0, 0x40000000')
    a(f'  s_or_b32 {sForce}, {sForce}, {sT1}')
    a(f'  v_mov_b32 {vInc}, {sT0}')
    a(f'  v_mov_b32 {vCnt}, {L_CNT}')
    a(f'  v_mov_b32 {vM}, {f32(-1e30)}')
    a(f'  v_mov_b32 {vNegM}, {f32(1e30*LOG2E)}')
    a(f'  v_mov_b32 {vLs}, 0')
    for r in range(4):
        a(f'  v_mov_b32 v{O+r}, 0')
    a('  v_bfe_u32 v26, v0, 3, 1')
    a('  v_lshlrev_b32 v26, 8, v26')
    a('  v_lshl_add_u32 v26, v25, 4, v26')
    a('L_qwait:')
    a(f'  ds_read_b32 v27, {vCnt} offset:{L_FLAG-L_CNT}')
    a('  s_waitcnt lgkmcnt(0)')
    a(f'  v_readfirstlane_b32 {sT0}, v27')
    a(f'  s_cmp_eq_u32 {sT0}, 1')
    a('  s_cbranch_scc1 L_qgot')
    a('  s_sleep 2')
    a('  s_branch L_qwait')
    a('L_qgot:')
    for j in range(4):
        a(f'  ds_read_b128 {vr(QF+4*j)}, v26 offset:{L_Q+64*j}')
    a(f'  v_mov_b32 v27, {L_TAG}')
    a(f'  ds_read_b32 {vTagV}, v27')
    a('  s_waitcnt lgkmcnt(0)')
    stamp('qready')

    rare = []
    NW = 8 * D - 4
    def tile(slot):
        kb = RING + slot * 32
        vb = kb + 16
        t = [f'v{T+i}' for i in range(4)]
        mx, tmp = f'v{T+4}', f'v{T+5}'
        pb = [f'v{T+6}', f'v{T+7}']
        a(f'  s_cmp_ge_u32 {sOff[slot]}, 0x100000')
        a('  s_cbranch_scc1 L_done')
        a(f'  s_waitcnt vmcnt({NW})')
        a('  s_mov_b64 exec, 1')
        a(f'  ds_add_rtn_u32 {vTick}, {vCnt}, {vInc}')
        a('  s_mov_b64 exec, -1')
        for j in range(4):
            c = '0' if j == 0 else vr(S)
            a(f'  v_mfma_f32_16x16x32_bf16 {vr(S)}, {vr(kb+4*j)}, {vr(QF+4*j)}, {c}')
        a('  s_waitcnt lgkmcnt(0)')
        a(f'  v_readfirstlane_b32 {sT0}, {vTick}')
        a(f'  s_and_b32 {sT1}, {sT0}, 0xffff8000')
        a(f'  s_add_u32 {sT0}, {sT0}, {sT1}')
        a(f'  s_xor_b32 {sOff[slot]}, {sT0}, {sForce}')
        loadK(slot)
        a(f'  v_cvt_pk_bf16_f32 {t[0]}, v{S}, v{S+1}')
        a(f'  v_cvt_pk_bf16_f32 {t[2]}, v{S+2}, v{S+3}')
        def unpack():
            a(f'  v_and_b32 {t[1]}, 0xffff0000, {t[0]}')
            a(f'  v_lshlrev_b32 {t[0]}, 16, {t[0]}')
            a(f'  v_and_b32 {t[3]}, 0xffff0000, {t[2]}')
            a(f'  v_lshlrev_b32 {t[2]}, 16, {t[2]}')
        unpack()
        for i in range(4):
            a(f'  v_mul_f32 {t[i]}, {sScale}, {t[i]}')
        a(f'  v_cvt_pk_bf16_f32 {t[0]}, {t[0]}, {t[1]}')
        a(f'  v_cvt_pk_bf16_f32 {t[2]}, {t[2]}, {t[3]}')
        unpack()
        a(f'  v_max3_f32 {mx}, {t[0]}, {t[1]}, {t[2]}')
        a(f'  v_max_f32 {mx}, {mx}, {t[3]}')
        a(f'  v_cmp_gt_f32 vcc, {mx}, {vM}')
        a(f'  s_cbranch_vccnz L_rare{slot}')
        a(f'L_back{slot}:')
        for i in range(4):
            a(f'  v_fma_f32 {t[i]}, {t[i]}, {sLog2e}, {vNegM}')
        for i in range(4):
            a(f'  v_exp_f32 {t[i]}, {t[i]}')
        a(f'  v_cvt_pk_bf16_f32 {pb[0]}, {t[0]}, {t[1]}')
        a(f'  v_add_f32 {tmp}, {t[0]}, {t[1]}')
        a(f'  v_cvt_pk_bf16_f32 {pb[1]}, {t[2]}, {t[3]}')
        a(f'  v_add_f32 {mx}, {t[2]}, {t[3]}')
        for r in range(4):
            for d in range(4):
                a(f'  v_perm_b32 v{AF+4*r+d}, {pb[r//2]}, {pb[r//2]}, v{SEL+(r&1)*4+d}')
        a(f'  v_add_f32 {tmp}, {tmp}, {mx}')
        a(f'  v_add_f32 {vLs}, {vLs}, {tmp}')
        a(f'  s_waitcnt vmcnt({NW})')
        for r in range(4):
            a(f'  v_mfma_f32_16x16x32_bf16 {vr(O)}, {vr(AF+4*r)}, {vr(vb+4*r)}, {vr(O)}')
        loadV(slot)
        r_ = rare.append
        r_(f'L_rare{slot}:')
        for p in ['v_permlane32_swap_b32', 'v_permlane16_swap_b32']:
            r_(f'  v_mov_b32 {tmp}, {mx}')
            r_('  s_nop 1')
            r_(f'  {p} {tmp}, {mx}')
            r_(f'  v_max_f32 {mx}, {mx}, {tmp}')
        r_(f'  v_max_f32 {mx}, {mx}, {vM}')
        r_(f'  v_sub_f32 {tmp}, {vM}, {mx}')
        r_(f'  v_mul_f32 {tmp}, {sLog2e}, {tmp}')
        r_(f'  v_exp_f32 {tmp}, {tmp}')
        r_(f'  v_mov_b32 {vM}, {mx}')
        r_(f'  v_mul_f32 {vNegM}, {sNLog2e}, {mx}')
        r_(f'  v_mul_f32 {vLs}, {vLs}, {tmp}')
        r_(f'  v_mov_b32_dpp {mx}, {tmp} row_ror:8{DPPM}')
        r_(f'  v_cndmask_b32 {mx}, {mx}, {tmp}, {sSame}')
        for r in range(4):
            r_(f'  v_mul_f32 v{O+r}, v{O+r}, {mx}')
        r_(f'  s_branch L_back{slot}')
    a('.p2align 6')
    a('L_loop:')
    for d in range(D):
        tile(d)
    if 'trace' in exp:
        a('  s_memrealtime s[92:93]')
        a(f'  s_lshr_b32 {sT0}, {sOff[0]}, 16')
        a('  s_waitcnt lgkmcnt(0)')
        a(f'  v_cmp_eq_u32 vcc, {sT0}, v0')
        a('  v_mov_b32 v251, s92')
        a('  s_nop 1')
        a('  v_cndmask_b32 v252, v252, v251, vcc')
    a('  s_branch L_loop')
    o += rare

    a('.p2align 6')
    a('L_helper:')
    a('  s_setprio 3')
    XA, XB, XF, WQ, GQ = 64, 74, 84, 104, 176
    vXC = 'v73'
    a('  v_bfe_u32 v26, v0, 3, 1')
    a('  v_mul_u32_u24 v26, 1152, v26')
    a('  v_and_b32 v28, 7, v0')
    a('  v_lshl_add_u32 v28, v25, 3, v28')
    a('  v_mad_u32_u24 v28, v28, 36, v26')
    a('  v_mad_u32_u24 v29, v25, 36, v26')
    a('  v_mul_u32_u24 v30, 0x24000, v25')
    a('  v_add_u32 v30, v30, v27')
    a('  v_lshlrev_b32 v31, 1, v0')
    a(f'  v_mov_b32 v32, {L_CNT}')
    a(f'  v_mov_b32 v33, {(7*D)<<11}')
    a('  v_mov_b32 v34, 0')
    a('  ds_write_b32 v32, v33')
    a(f'  ds_write_b32 v32, v34 offset:{L_FLAG-L_CNT}')
    sRG, sCG, sI16 = sU[0], sU[1], sU[2]
    a(f'  s_lshl_b32 {sI16}, {sB}, 3')
    a(f'  s_or_b32 {sI16}, {sI16}, {sC}')
    a(f'  s_lshr_b32 {sRG}, {sI16}, 1')
    a(f'  s_and_b32 {sCG}, {sI16}, 1')
    a(f'  s_mul_i32 {sT1}, {sRG}, 144')
    a(f'  s_mul_i32 {sT0}, {sRG}, {72*8192}')
    a(f'  s_lshl_b32 {sU[3]}, {sHKV}, 9')
    a(f'  s_add_u32 {sT0}, {sT0}, {sU[3]}')
    a(f'  s_lshl_b32 {sU[3]}, {sCG}, 8')
    a(f'  s_add_u32 {sT0}, {sT0}, {sU[3]}')
    a('  s_mov_b32 s46, 2304')
    a('  s_mov_b32 s47, 0x20000')
    a(f'  s_mov_b32 s50, {576*8192}')
    a('  s_mov_b32 s51, 0x20000')
    a('  s_waitcnt lgkmcnt(0)')
    a('  s_mov_b32 s44, s4')
    a('  s_and_b32 s45, s5, 0xffff')
    a('  s_mov_b32 s48, s10')
    a('  s_and_b32 s49, s11, 0xffff')
    a(f'  buffer_load_dwordx4 {vr(XA)}, v28, {X_}, 0 offen')
    a(f'  buffer_load_dwordx4 {vr(XA+4)}, v28, {X_}, 0 offen offset:16')
    a(f'  buffer_load_dword v{XA+8}, v28, {X_}, 0 offen offset:32')
    a(f'  buffer_load_dwordx4 {vr(XB)}, v29, {X_}, {sT1} offen')
    a(f'  buffer_load_dwordx4 {vr(XB+4)}, v29, {X_}, {sT1} offen offset:16')
    a(f'  buffer_load_dword v{XB+8}, v29, {X_}, {sT1} offen offset:32')
    for n in range(18):
        a(f'  buffer_load_dwordx4 {vr(WQ+4*n)}, v30, {WQ_}, {sT0} offen nt')
        if n < 17:
            a(f'  s_add_u32 {sT0}, {sT0}, 8192')
    a('  s_waitcnt lgkmcnt(0)')
    a('  s_barrier')
    a(f'  s_load_dword {sTag}, s[28:29], 0')
    a(f'  s_add_u32 {sU[4]}, s28, {EP2}')
    a(f'  s_addc_u32 {sU[5]}, s29, 0')
    a(f'  s_load_dword {sSpin}, s[84:85], 0')
    a(f'  s_load_dword {sB2}, s[22:23], 0')
    sFG, sOS = sU[6], sU[7]
    a(f'  s_mul_i32 {sFG}, {sIdx}, 57')
    a(f'  s_lshr_b32 {sFG}, {sFG}, 9')
    a(f'  s_mul_i32 {sT0}, {sFG}, 9')
    a(f'  s_sub_u32 {sOS}, {sIdx}, {sT0}')
    a(f'  s_min_u32 {sFG}, {sFG}, 11')
    a(f'  s_mul_i32 {sT0}, {sB}, 1152')
    a(f'  s_lshl_b32 {sT1}, {sOS}, 7')
    a(f'  s_add_u32 {sT0}, {sT0}, {sT1}')
    a(f'  buffer_load_ushort {vXC}, v31, {X_}, {sT0} offen')
    stamp('issued')
    consts()
    srd(52, 's12', 's13', 4096 * 1152)
    srd(60, 's24', 's25', 2304)
    a(f'  s_mov_b32 {sGC1}, {f32(GC1)}')
    selectors('v26', 'v27', 'v28', 'v29')
    def half_sum(v, t):
        for m in ['quad_perm:[1,0,3,2]', 'quad_perm:[2,3,0,1]', 'row_half_mirror']:
            a('  s_nop 1')
            a(f'  v_add_f32_dpp {v}, {v}, {v} {m}{DPPM}')
        for p in ['v_permlane16_swap_b32', 'v_permlane32_swap_b32']:
            a(f'  v_mov_b32 {t}, {v}')
            a('  s_nop 1')
            a(f'  {p} {t}, {v}')
            a(f'  v_add_f32 {v}, {v}, {t}')
    def ln_stats(mu, rd, t0, t1, t2):
        a(f'  v_add_f32 {t0}, v{XF}, v{XF+1}')
        a(f'  v_add_f32 {t1}, v{XF+2}, v{XF+3}')
        for k in range(4, 18, 2):
            a(f'  v_add_f32 {t0}, {t0}, v{XF+k}')
            a(f'  v_add_f32 {t1}, {t1}, v{XF+k+1}')
        a(f'  v_add_f32 {t0}, {t0}, {t1}')
        half_sum(t0, t1)
        a(f'  v_mul_f32 {mu}, {f32(1.0/576)}, {t0}')
        for k in range(18):
            tt = t1 if k & 1 else t2
            a(f'  v_sub_f32 {tt}, v{XF+k}, {mu}')
            if k == 0:
                a(f'  v_mul_f32 {t0}, {tt}, {tt}')
            else:
                a(f'  v_fmac_f32 {t0}, {tt}, {tt}')
        half_sum(t0, t1)
        a(f'  v_mul_f32 {t0}, {f32(1.0/576)}, {t0}')
        rnd(t0)
        a(f'  v_add_f32 {t0}, {f32(1e-5)}, {t0}')
        rnd(t0)
        a(f'  v_sqrt_f32 {t0}, {t0}')
        a('  s_nop 0')
        rnd(t0)
        a(f'  v_rcp_f32 {rd}, {t0}')
        rnd(mu)
    def norm_pair(lo, hi, dst, mu, rd):
        a(f'  v_sub_f32 {lo}, {lo}, {mu}')
        a(f'  v_sub_f32 {hi}, {hi}, {mu}')
        a(f'  v_cvt_pk_bf16_f32 {lo}, {lo}, {hi}')
        a(f'  v_and_b32 {hi}, 0xffff0000, {lo}')
        a(f'  v_lshlrev_b32 {lo}, 16, {lo}')
        a(f'  v_mul_f32 {lo}, {lo}, {rd}')
        a(f'  v_mul_f32 {hi}, {hi}, {rd}')
        a(f'  v_cvt_pk_bf16_f32 {dst}, {lo}, {hi}')
    a('  s_waitcnt vmcnt(22)')
    stamp('xarr')
    for k in range(9):
        a(f'  v_lshlrev_b32 v{XF+2*k}, 16, v{XA+k}')
        a(f'  v_and_b32 v{XF+2*k+1}, 0xffff0000, v{XA+k}')
    vMu, vRd = 'v32', 'v33'
    ln_stats(vMu, vRd, 'v34', 'v35', 'v36')
    a('  s_waitcnt vmcnt(19) lgkmcnt(0)')
    a(f'  s_mul_i32 {sTag}, {sTag}, 1664525')
    a(f'  s_add_u32 {sTag}, {sTag}, 1013904223')
    a(f'  s_mul_i32 {sSpin}, {sSpin}, 0x9e3779b4')
    a(f'  s_add_u32 {sTag}, {sTag}, {sSpin}')
    a(f'  v_mov_b32 {vTagV}, {sTag}')
    for k in range(9):
        r = XB + k
        a(f'  v_lshlrev_b32 v34, 16, v{r}')
        a(f'  v_and_b32 v35, 0xffff0000, v{r}')
        norm_pair('v34', 'v35', f'v{r}', vMu, vRd)
        for hh in range(2):
            n = 2 * k + hh
            af = 24 + hh * 4
            for d in range(4):
                a(f'  v_perm_b32 v{af+d}, v{r}, v{r}, v{SEL+hh*4+d}')
        for hh in range(2):
            n = 2 * k + hh
            af = 24 + hh * 4
            if hh == 0:
                a(f'  s_waitcnt vmcnt({17 - 2*k})')
                a('  s_nop 0')
            c = '0' if n == 0 else vr(16)
            a(f'  v_mfma_f32_16x16x32_bf16 {vr(16)}, {vr(af)}, {vr(WQ+4*n)}, {c}')
    a('  v_and_b32 v34, 15, v0')
    a('  v_lshlrev_b32 v34, 6, v34')
    a('  v_bfe_u32 v35, v0, 4, 1')
    a('  v_lshl_add_u32 v34, v35, 5, v34')
    a('  v_lshrrev_b32 v35, 5, v0')
    a('  v_lshl_add_u32 v34, v35, 10, v34')
    a(f'  s_lshl_b32 {sT0}, {sHKV}, 4')
    a(f'  s_add_u32 {sT1}, {sT0}, {sI16}')
    a(f'  s_lshl_b32 {sT1}, {sT1}, 11')
    a(f'  s_add_u32 {sT1}, {sT1}, {QBOX}')
    a(f'  v_mov_b32 v21, {sTag}')
    a(f'  v_mov_b32 v23, {sTag}')
    a('  v_mov_b32 v22, v19')
    a('  v_mov_b32 v20, v18')
    a('  v_mov_b32 v18, v17')
    a(f'  v_mov_b32 v17, {sTag}')
    a(f'  v_mov_b32 v19, {sTag}')
    a(f'  buffer_store_dwordx4 v[16:19], v34, {WS_}, {sT1} offen sc1')
    a(f'  buffer_store_dwordx4 v[20:23], v34, {WS_}, {sT1} offen offset:16 sc1')
    stamp('qpub')
    sMu1, sRd1 = sU[8], sU[9]
    a(f'  s_lshl_b32 {sU[3]}, {sB}, 3')
    a(f'  v_readlane_b32 {sMu1}, {vMu}, {sU[3]}')
    a(f'  v_readlane_b32 {sRd1}, {vRd}, {sU[3]}')
    for k in range(9):
        norm_pair(f'v{XF+2*k}', f'v{XF+2*k+1}', 'v34', vMu, vRd)
        a(f'  v_lshlrev_b32 v{XF+2*k}, 16, v34')
        a(f'  v_and_b32 v{XF+2*k+1}, 0xffff0000, v34')
    ln_stats(vMu, vRd, 'v34', 'v35', 'v36')
    vH = 'v37'
    a('  s_waitcnt vmcnt(2)')
    a(f'  v_lshlrev_b32 {vH}, 16, {vXC}')
    a(f'  v_subrev_f32 {vH}, {sMu1}, {vH}')
    rnd(vH)
    a(f'  v_mul_f32 {vH}, {sRd1}, {vH}')
    rnd(vH)
    a(f'  v_readlane_b32 {sMu1}, {vMu}, {sU[3]}')
    a(f'  v_readlane_b32 {sRd1}, {vRd}, {sU[3]}')
    a('  s_nop 1')
    a(f'  v_subrev_f32 {vH}, {sMu1}, {vH}')
    rnd(vH)
    a(f'  v_mul_f32 {vH}, {sRd1}, {vH}')
    rnd(vH)
    def tagcheck(base, n, lbl_ok, lbl_retry, sl=1):
        tags = [f'v{base+2*k+1}' for k in range(2*n)]
        a(f'  v_max_u32 v35, {tags[0]}, {tags[1]}')
        a(f'  v_min_u32 v36, {tags[0]}, {tags[1]}')
        for k in range(2, 2*n, 2):
            a(f'  v_max3_u32 v35, v35, {tags[k]}, {tags[k+1]}')
            a(f'  v_min3_u32 v36, v36, {tags[k]}, {tags[k+1]}')
        a(f'  v_xor_b32 v35, v35, {vTagV}')
        a(f'  v_xor_b32 v36, v36, {vTagV}')
        a('  v_or_b32 v35, v35, v36')
        a('  v_cmp_ne_u32 vcc, 0, v35')
        a(f'  s_cbranch_vccz {lbl_ok}')
        a(f'  s_sleep {sl}')
        a(f'  s_add_u32 {sSpin}, {sSpin}, 1')
        a(f'  s_cmp_lt_u32 {sSpin}, 0x8000')
        a(f'  s_cbranch_scc1 {lbl_retry}')
    vWOoff, vBacc, vGC0 = 'v38', 'v39', 'v40'
    a(f'  v_mul_u32_u24 v34, 57, v0')
    a(f'  v_lshrrev_b32 v34, 9, v34')
    a(f'  v_mul_u32_u24 v35, 9, v34')
    a(f'  v_sub_u32 v35, v0, v35')
    a(f'  v_lshlrev_b32 v35, 4, v35')
    a(f'  v_mul_u32_u24 {vWOoff}, 1152, v34')
    a(f'  v_add_u32 {vWOoff}, {vWOoff}, v35')
    a(f'  v_mov_b32 {vBacc}, 0')
    a(f'  v_mov_b32 {vGC0}, {f32(GC0)}')
    sBo, sWOoff, sM0, sCnt = 's36', 's37', 's38', 's39'
    a(f'  s_mul_i32 {sBo}, {sFG}, 768')
    a(f'  s_mul_i32 {sWOoff}, {sHKV}, {256*1152}')
    a(f'  s_mul_i32 {sT1}, {sC}, 144')
    a(f'  s_add_u32 {sWOoff}, {sWOoff}, {sT1}')
    a(f'  s_mov_b32 {sM0}, {L_WO}')
    a(f'  s_mov_b32 {sCnt}, 0')
    sLim = 's40'
    a(f'  s_mov_b32 {sLim}, {NB1}')
    a('L_bloop:')
    a(f'  s_load_dwordx4 s[80:83], s[16:17], {sBo}')
    a(f'  s_load_dwordx4 s[84:87], s[18:19], {sBo}')
    a(f'  s_load_dwordx4 s[88:91], s[20:21], {sBo}')
    a(f'  s_sub_u32 {sT0}, {sCnt}, {DMA0}')
    a(f'  s_cmp_ge_u32 {sT0}, {0 if "nodma" in exp else 37}')
    a('  s_cbranch_scc1 L_nodma')
    a(f'  s_mov_b32 m0, {sM0}')
    a(f'  s_add_u32 {sM0}, {sM0}, 1008')
    a(f'  buffer_load_dwordx4 {vWOoff}, {WO_}, {sWOoff} offen nt lds')
    a(f'  s_add_u32 {sWOoff}, {sWOoff}, {7*1152}')
    a('L_nodma:')
    a('  s_waitcnt lgkmcnt(0)')
    for k in range(4):
        x0, x1, y0, y1, pk = 'v42', 'v43', 'v44', 'v45', 'v46'
        a(f'  s_lshl_b32 s64, s{80+k}, 16')
        a(f'  s_and_b32 s65, s{80+k}, 0xffff0000')
        a(f'  s_lshl_b32 s66, s{84+k}, 16')
        a(f'  s_and_b32 s67, s{84+k}, 0xffff0000')
        a(f'  s_lshl_b32 s68, s{88+k}, 16')
        a(f'  s_and_b32 s69, s{88+k}, 0xffff0000')
        a(f'  v_mul_f32 {x0}, s64, {vH}')
        a(f'  v_mul_f32 {x1}, s65, {vH}')
        a(f'  v_cvt_pk_bf16_f32 {pk}, {x0}, {x1}')
        a(f'  v_lshlrev_b32 {x0}, 16, {pk}')
        a(f'  v_and_b32 {x1}, 0xffff0000, {pk}')
        a(f'  v_add_f32 {x0}, s66, {x0}')
        a(f'  v_add_f32 {x1}, s67, {x1}')
        a(f'  v_cvt_pk_bf16_f32 {pk}, {x0}, {x1}')
        a(f'  v_lshlrev_b32 {x0}, 16, {pk}')
        a(f'  v_and_b32 {x1}, 0xffff0000, {pk}')
        a(f'  v_mul_f32 {y0}, {x0}, {x0}')
        a(f'  v_mul_f32 {y1}, {x1}, {x1}')
        a(f'  v_fma_f32 {y0}, {y0}, {sGC1}, {vGC0}')
        a(f'  v_fma_f32 {y1}, {y1}, {sGC1}, {vGC0}')
        a(f'  v_mul_f32 {y0}, {y0}, {x0}')
        a(f'  v_mul_f32 {y1}, {y1}, {x1}')
        a(f'  v_exp_f32 {y0}, {y0}')
        a(f'  v_exp_f32 {y1}, {y1}')
        a(f'  v_add_f32 {y0}, 1.0, {y0}')
        a(f'  v_add_f32 {y1}, 1.0, {y1}')
        a(f'  v_rcp_f32 {y0}, {y0}')
        a(f'  v_rcp_f32 {y1}, {y1}')
        a(f'  v_mul_f32 {y0}, {y0}, {x0}')
        a(f'  v_mul_f32 {y1}, {y1}, {x1}')
        a(f'  v_cvt_pk_bf16_f32 {pk}, {y0}, {y1}')
        a(f'  v_lshlrev_b32 {x0}, 16, {pk}')
        a(f'  v_and_b32 {x1}, 0xffff0000, {pk}')
        a(f'  v_fmac_f32 {vBacc}, s68, {x0}')
        a(f'  v_fmac_f32 {vBacc}, s69, {x1}')
    a(f'  s_add_u32 {sBo}, {sBo}, 16')
    a(f'  s_add_u32 {sCnt}, {sCnt}, 1')
    a(f'  s_cmp_lt_u32 {sCnt}, {sLim}')
    a('  s_cbranch_scc1 L_bloop')
    a(f'  s_cmp_eq_u32 {sLim}, 48')
    a('  s_cbranch_scc1 L_bdone')
    a('  v_and_b32 v34, 31, v0')
    a('  v_lshlrev_b32 v34, 5, v34')
    a('  v_lshrrev_b32 v35, 5, v0')
    a('  v_lshl_add_u32 v34, v35, 11, v34')
    a(f'  s_lshl_b32 {sT0}, {sHKV}, 15')
    a(f'  s_lshl_b32 {sT1}, {sB}, 10')
    a(f'  s_add_u32 {sT0}, {sT0}, {sT1}')
    a(f'  s_add_u32 {sT0}, {sT0}, {QBOX}')
    a(f'  s_mov_b32 {sSpin}, 0')
    stamp('q0')
    a('L_pollq:')
    a(f'  s_mov_b32 {sT1}, {sT0}')
    for k in range(8):
        a(f'  buffer_load_dwordx4 {vr(GQ+8*k)}, v34, {WS_}, {sT1} offen sc1')
        a(f'  buffer_load_dwordx4 {vr(GQ+8*k+4)}, v34, {WS_}, {sT1} offen offset:16 sc1')
        if k < 7:
            a(f'  s_add_u32 {sT1}, {sT1}, 4096')
    a('  s_waitcnt vmcnt(0)')
    tagcheck(GQ, 16, 'L_gotq', 'L_pollq', 16)
    a('L_gotq:')
    for k in range(1, 8):
        for r in range(4):
            a(f'  v_add_f32 v{GQ+2*r}, v{GQ+2*r}, v{GQ+8*k+2*r}')
    a(f'  v_cvt_pk_bf16_f32 v16, v{GQ}, v{GQ+2}')
    a(f'  v_cvt_pk_bf16_f32 v17, v{GQ+4}, v{GQ+6}')
    a('  v_lshlrev_b32 v34, 3, v0')
    a(f'  ds_write_b64 v34, v[16:17] offset:{L_Q}')
    a(f'  v_mov_b32 v34, {L_TAG}')
    a('  v_mov_b32 v35, 1')
    a(f'  ds_write_b32 v34, {vTagV}')
    a('  s_waitcnt lgkmcnt(0)')
    a(f'  ds_write_b32 v34, v35 offset:{L_FLAG-L_TAG}')
    stamp('qready')
    a('  s_setprio 0')
    a(f'  s_mov_b32 {sLim}, 48')
    a('  s_branch L_bloop')
    a('L_bdone:')
    a(f'  s_lshl_b32 {sT1}, {sL}, 12')
    a(f'  s_add_u32 {sT1}, {sT1}, {BLK}')
    a(f'  s_cmp_ge_u32 {sIdx}, 108')
    a('  s_cbranch_scc1 L_nobst')
    a(f'  v_mov_b32 v42, {vBacc}')
    a(f'  v_mov_b32 v43, {vTagV}')
    a('  v_lshlrev_b32 v34, 3, v0')
    a(f'  buffer_store_dwordx2 v[42:43], v34, {WS_}, {sT1} offen offset:{B_B} sc1')
    a('L_nobst:')
    stamp('bdone')
    a(f'  s_lshl_b32 {sT0}, {sC}, 1')
    a(f'  s_add_u32 {sT0}, {sT0}, {sB}')
    a(f'  s_cmp_lg_u32 {sT0}, {sHKV}')
    a('  s_cbranch_scc1 L_hwait')
    a(f'  v_mov_b32 v34, {L_CNT}')
    a('L_bgwait:')
    a('  ds_read_b32 v35, v34')
    a('  s_sleep 32')
    a('  s_waitcnt lgkmcnt(0)')
    a(f'  v_readfirstlane_b32 {sT0}, v35')
    a(f'  s_cmp_lt_u32 {sT0}, {BG<<11}')
    a('  s_cbranch_scc1 L_bgwait')
    a(f'  s_mul_i32 {sT0}, {sC}, 72')
    a(f'  v_lshl_add_u32 v34, v0, 1, {sT0}')
    a('  v_lshrrev_b32 v42, 6, v34')
    a('  v_lshlrev_b32 v42, 12, v42')
    a('  v_and_b32 v43, 63, v34')
    a('  v_lshl_add_u32 v42, v43, 3, v42')
    a('  v_lshlrev_b32 v51, 1, v34')
    a(f'  s_mul_i32 {sT1}, {sB}, 1152')
    a(f'  v_add_u32 v51, {sT1}, v51')
    a(f'  s_lshl_b32 {sT0}, {sB}, 19')
    a(f'  s_add_u32 {sT0}, {sT0}, {BLK}')
    a('  s_mov_b32 exec_lo, -1')
    a('  s_mov_b32 exec_hi, 0xf')
    a(f'  buffer_load_dword v50, v51, {X_}, 0 offen')
    a(f'  s_mov_b32 {sSpin}, 0')
    a('L_pollb:')
    a(f'  s_mov_b32 {sT1}, {sT0}')
    for k in range(12):
        a(f'  buffer_load_dwordx4 {vr(GQ+4*k)}, v42, {WS_}, {sT1} offen offset:{B_B} sc1')
        if k < 11:
            a(f'  s_add_u32 {sT1}, {sT1}, {9*4096}')
    a('  s_waitcnt vmcnt(0)')
    tagcheck(GQ, 12, 'L_gotb', 'L_pollb', 64)
    a('L_gotb:')
    for k in range(1, 12):
        a(f'  v_add_f32 v{GQ}, v{GQ}, v{GQ+4*k}')
        a(f'  v_add_f32 v{GQ+2}, v{GQ+2}, v{GQ+4*k+2}')
    a(f'  s_lshl_b32 {sB2}, {sB2}, 16')
    a(f'  v_cvt_pk_bf16_f32 v34, v{GQ}, v{GQ+2}')
    a('  v_lshlrev_b32 v48, 16, v34')
    a('  v_and_b32 v49, 0xffff0000, v34')
    a(f'  v_add_f32 v48, {sB2}, v48')
    a(f'  v_add_f32 v49, {sB2}, v49')
    a('  v_cvt_pk_bf16_f32 v34, v48, v49')
    a('  v_lshlrev_b32 v48, 16, v34')
    a('  v_and_b32 v49, 0xffff0000, v34')
    a('  s_mov_b64 exec, -1')
    a('L_hwait:')
    a('  s_waitcnt vmcnt(0)')
    a('  s_branch L_tail')

    a('.p2align 6')
    a('L_done:')
    stamp('loopend')
    tmp = f'v{T}'
    for p in ['v_permlane32_swap_b32', 'v_permlane16_swap_b32']:
        a(f'  v_mov_b32 {tmp}, {vLs}')
        a('  s_nop 1')
        a(f'  {p} {tmp}, {vLs}')
        a(f'  v_add_f32 {vLs}, {vLs}, {tmp}')
    a('  v_and_b32 v24, 15, v0')
    a('  v_lshlrev_b32 v24, 5, v24')
    a('  v_bfe_u32 v25, v0, 4, 1')
    a('  v_lshl_add_u32 v24, v25, 4, v24')
    a('  v_lshrrev_b32 v25, 5, v0')
    a('  v_lshl_add_u32 v24, v25, 9, v24')
    a(f'  s_lshl_b32 {sT0}, {sW}, 10')
    a(f'  v_add_u32 v24, {sT0}, v24')
    a(f'  ds_write_b128 v24, {vr(O)} offset:{L_OP}')
    a('  v_bfe_u32 v24, v0, 3, 1')
    a('  v_lshlrev_b32 v24, 6, v24')
    a(f'  s_lshl_b32 {sT0}, {sW}, 3')
    a(f'  v_add_u32 v24, {sT0}, v24')
    a(f'  v_mov_b32 v26, {vM}')
    a(f'  v_mov_b32 v27, {vLs}')
    a('  s_mov_b64 exec, 0x101')
    a(f'  ds_write_b64 v24, v[26:27] offset:{L_ML}')
    a('  s_mov_b64 exec, -1')
    a('  s_waitcnt vmcnt(0) lgkmcnt(0)')

    E, WOF = 64, 128
    a('L_tail:')
    if 'notail' in exp:
        a('  s_branch L_fin')
    a('  s_barrier')
    a(f'  s_lshl_b32 {sT1}, {sL}, 12')
    a(f'  s_add_u32 {sT1}, {sT1}, {BLK}')
    a(f'  s_cmp_lg_u32 {sW}, 0')
    a('  s_cbranch_scc1 L_nomerge')
    a('  v_lshrrev_b32 v24, 5, v0')
    a('  v_lshlrev_b32 v24, 6, v24')
    ML = E + 32
    for k in range(4):
        a(f'  ds_read_b128 {vr(ML+4*k)}, v24 offset:{L_ML+16*k}')
    for k in range(1, 8):
        a(f'  ds_read_b128 {vr(E+4*k)}, {vL16} offset:{L_OP+1024*k}')
    a('  v_lshlrev_b32 v25, 5, v0')
    a(f'  v_mov_b32 v29, {vTagV}')
    a(f'  v_mov_b32 v31, {vTagV}')
    a(f'  v_mov_b32 v33, {vTagV}')
    a(f'  v_mov_b32 v35, {vTagV}')
    a(f'  v_mov_b32 v37, {vTagV}')
    a(f'  v_mov_b32 v39, {vTagV}')
    a('  s_waitcnt lgkmcnt(7)')
    a(f'  v_max3_f32 v36, v{ML+2}, v{ML+4}, v{ML+6}')
    a(f'  v_max3_f32 v36, v36, v{ML+8}, v{ML+10}')
    a(f'  v_max3_f32 v36, v36, v{ML+12}, v{ML+14}')
    a(f'  v_mul_f32 v26, {sNLog2e}, v36')
    for k in range(1, 8):
        a(f'  v_fma_f32 v{ML+2*k}, v{ML+2*k}, {sLog2e}, v26')
    for k in range(1, 8):
        a(f'  v_exp_f32 v{ML+2*k}, v{ML+2*k}')
    a(f'  v_mul_f32 v38, v{ML+2}, v{ML+3}')
    for k in range(2, 8):
        a(f'  v_fmac_f32 v38, v{ML+2*k}, v{ML+2*k+1}')
    a('  s_waitcnt lgkmcnt(0)')
    for r in range(4):
        a(f'  v_mul_f32 v{28+2*r}, v{ML+2}, v{E+4+r}')
    for k in range(2, 8):
        for r in range(4):
            a(f'  v_fmac_f32 v{28+2*r}, v{ML+2*k}, v{E+4*k+r}')
    a(f'  buffer_store_dwordx4 v[28:31], v25, {WS_}, {sT1} offen sc1')
    a(f'  buffer_store_dwordx4 v[32:35], v25, {WS_}, {sT1} offen offset:16 sc1')
    a('  v_lshrrev_b32 v24, 2, v24')
    a(f'  s_lshl_b32 {sT0}, {sL}, 5')
    a(f'  s_add_u32 {sT0}, {sT0}, {GML}')
    a('  s_mov_b32 exec_lo, 1')
    a('  s_mov_b32 exec_hi, 1')
    a(f'  buffer_store_dwordx4 v[36:39], v24, {WS_}, {sT0} offen sc1')
    a('  s_mov_b64 exec, -1')
    a('L_nomerge:')
    stamp('pub1')
    if 'nopoll' in exp:
        a('  s_branch L_fin')
    a('  v_lshrrev_b32 v24, 4, v0')
    a('  v_mul_u32_u24 v24, 1152, v24')
    a('  v_bfe_u32 v25, v0, 2, 2')
    a('  v_mul_u32_u24 v25, 144, v25')
    a('  v_and_b32 v26, 3, v0')
    a('  v_lshlrev_b32 v26, 3, v26')
    a('  v_add3_u32 v24, v24, v25, v26')
    a(f'  s_mul_i32 {sT0}, {sW}, 4608')
    a(f'  v_add_u32 v24, {sT0}, v24')
    for ct in range(5):
        a(f'  ds_read_b64_tr_b16 {vr(WOF+4*ct,2)}, v24 offset:{L_WO+ct*32}')
        a(f'  ds_read_b64_tr_b16 {vr(WOF+4*ct+2,2)}, v24 offset:{L_WO+ct*32+4*144}')
    a('  v_and_b32 v25, 7, v0')
    a('  v_lshlrev_b32 v25, 12, v25')
    a('  v_lshrrev_b32 v26, 3, v0')
    a('  v_lshl_add_u32 v26, v26, 5, v25')
    a(f'  s_and_b32 {sT0}, {sT1}, 0xffff8000')
    a(f'  s_lshl_b32 s64, {sW}, 8')
    a(f'  s_add_u32 s64, s64, {sT0}')
    a(f'  s_mov_b32 {sSpin}, 0')
    R8 = ['quad_perm:[1,0,3,2]', 'quad_perm:[2,3,0,1]', 'row_half_mirror']
    a(f'  s_cmp_lg_u32 {sW}, 0')
    a('  s_cbranch_scc1 L_go1')
    a('  v_and_b32 v27, 7, v0')
    a('  v_lshlrev_b32 v27, 5, v27')
    a('  v_bfe_u32 v28, v0, 3, 1')
    a('  v_lshl_add_u32 v27, v28, 4, v27')
    a(f'  s_and_b32 s65, {sL}, 0xf8')
    a('  s_lshl_b32 s65, s65, 5')
    a(f'  s_add_u32 s65, s65, {GML}')
    a('  s_mov_b64 exec, 0xffff')
    a('L_pollml:')
    a(f'  buffer_load_dwordx4 {vr(E+8)}, v27, {WS_}, s65 offen sc1')
    a('  s_waitcnt vmcnt(0)')
    tagcheck(E+8, 1, 'L_gotml', 'L_pollml', SL1)
    a('L_gotml:')
    vm, vl = f'v{E+8}', f'v{E+10}'
    a(f'  v_mov_b32 v34, {vm}')
    for m in R8:
        a('  s_nop 1')
        a(f'  v_max_f32_dpp v34, v34, v34 {m}{DPPM}')
    a(f'  v_sub_f32 {vm}, {vm}, v34')
    a(f'  v_mul_f32 {vm}, {sLog2e}, {vm}')
    a(f'  v_exp_f32 {vm}, {vm}')
    a('  s_nop 0')
    a(f'  v_mul_f32 {vl}, {vl}, {vm}')
    for m in R8:
        a('  s_nop 1')
        a(f'  v_add_f32_dpp {vl}, {vl}, {vl} {m}{DPPM}')
    a(f'  v_rcp_f32 {vl}, {vl}')
    a('  v_lshlrev_b32 v27, 2, v0')
    a(f'  v_mul_f32 {vm}, {vm}, {vl}')
    a(f'  ds_write_b32 v27, {vm} offset:{L_WGT}')
    a('  s_mov_b64 exec, -1')
    a('  s_waitcnt lgkmcnt(0)')
    a('L_go1:')
    a('  s_barrier')
    stamp('ml')
    a('  v_and_b32 v27, 7, v0')
    a('  v_lshlrev_b32 v27, 2, v27')
    a(f'  s_lshr_b32 s65, {sW}, 2')
    a('  s_lshl_b32 s65, s65, 5')
    a('  v_add_u32 v27, s65, v27')
    a('L_poll1:')
    a(f'  buffer_load_dwordx4 {vr(E)}, v26, {WS_}, s64 offen sc1')
    a(f'  buffer_load_dwordx4 {vr(E+4)}, v26, {WS_}, s64 offen offset:16 sc1')
    a(f'  ds_read_b32 {vm}, v27 offset:{L_WGT}')
    a('  s_waitcnt vmcnt(0) lgkmcnt(0)')
    tagcheck(E, 2, 'L_got1', 'L_poll1', 2)
    a('L_got1:')
    stamp('hop1')
    od = [f'v{E+2*r}' for r in range(4)]
    for r in range(4):
        a(f'  v_mul_f32 {od[r]}, {od[r]}, {vm}')
    for m in R8:
        for r in range(4):
            a(f'  v_add_f32_dpp {od[r]}, {od[r]}, {od[r]} {m}{DPPM}')
    a(f'  v_cvt_pk_bf16_f32 v40, {od[0]}, {od[1]}')
    a(f'  v_cvt_pk_bf16_f32 v41, {od[2]}, {od[3]}')
    a('  s_nop 1')
    a(f'  v_mov_b32_dpp v42, v40 row_ror:8{DPPM}')
    a(f'  v_mov_b32_dpp v43, v41 row_ror:8{DPPM}')
    a(f'  s_mul_i32 {sT0}, {sW}, 320')
    a('  v_lshlrev_b32 v44, 2, v0')
    a(f'  v_add_u32 v44, {sT0}, v44')
    a('  s_waitcnt lgkmcnt(0)')
    for ct in range(5):
        a(f'  v_mfma_f32_16x16x32_bf16 {vr(E+16+4*ct)}, v[40:43], {vr(WOF+4*ct)}, 0')
    a('  s_mov_b64 exec, 0xffff')
    a('  s_nop 7')
    for ct in range(5):
        a(f'  ds_write_b32 v44, v{E+16+4*ct} offset:{L_Y+64*ct}')
    a('  s_mov_b64 exec, -1')
    a('  s_waitcnt lgkmcnt(0)')
    a('  s_barrier')
    a(f'  s_cmp_lg_u32 {sW}, 0')
    a('  s_cbranch_scc1 L_fin')
    a('  v_lshlrev_b32 v24, 3, v0')
    a('  s_mov_b32 exec_hi, 0xf')
    for k in range(8):
        a(f'  ds_read_b64 {vr(E+2*k,2)}, v24 offset:{L_Y+320*k}')
    a(f'  v_mov_b32 v29, {vTagV}')
    a(f'  v_mov_b32 v31, {vTagV}')
    a('  s_waitcnt lgkmcnt(6)')
    a(f'  v_add_f32 v28, v{E}, v{E+2}')
    a(f'  v_add_f32 v30, v{E+1}, v{E+3}')
    for k in range(2, 8):
        a(f'  s_waitcnt lgkmcnt({7-k})')
        a(f'  v_add_f32 v28, v28, v{E+2*k}')
        a(f'  v_add_f32 v30, v30, v{E+2*k+1}')
    a(f'  buffer_store_dwordx4 v[28:31], {vL16}, {WS_}, {sT1} offen offset:{B_Y} sc1')
    a(f'  s_lshl_b32 {sT0}, {sC}, 1')
    a(f'  s_add_u32 {sT0}, {sT0}, {sB}')
    a(f'  s_cmp_lg_u32 {sT0}, {sHKV}')
    a('  s_cbranch_scc1 L_fin')
    srd(60, 's24', 's25', 2304)
    a(f'  s_mul_i32 {sT0}, {sC}, 144')
    a(f'  s_mul_i32 {sT1}, {sB}, 1152')
    a(f'  s_add_u32 {sT0}, {sT0}, {sT1}')
    a(f'  v_lshl_add_u32 v51, v0, 2, {sT0}')
    a(f'  s_lshl_b32 {sT0}, {sB}, 7')
    a(f'  s_add_u32 {sT0}, {sT0}, {sC}')
    a(f'  s_lshl_b32 {sT0}, {sT0}, 12')
    a(f'  s_add_u32 {sT0}, {sT0}, {BLK}')
    a(f'  s_mov_b32 {sSpin}, 0')
    a('L_poll2:')
    a(f'  s_mov_b32 {sT1}, {sT0}')
    for k in range(16):
        a(f'  buffer_load_dwordx4 {vr(E+4*k)}, {vL16}, {WS_}, {sT1} offen offset:{B_Y} sc1')
        if k < 15:
            a(f'  s_add_u32 {sT1}, {sT1}, 0x8000')
    a('  s_waitcnt vmcnt(0)')
    tagcheck(E, 16, 'L_got2', 'L_poll2', 2)
    a('L_got2:')
    for k in range(1, 16):
        a(f'  v_add_f32 v{E}, v{E}, v{E+4*k}')
        a(f'  v_add_f32 v{E+2}, v{E+2}, v{E+4*k+2}')
    a(f'  v_cvt_pk_bf16_f32 v30, v{E}, v{E+2}')
    a('  v_lshlrev_b32 v28, 16, v30')
    a('  v_and_b32 v29, 0xffff0000, v30')
    a('  v_lshlrev_b32 v32, 16, v50')
    a('  v_and_b32 v33, 0xffff0000, v50')
    a('  v_add_f32 v28, v28, v32')
    a('  v_add_f32 v29, v29, v33')
    a('  v_cvt_pk_bf16_f32 v30, v28, v29')
    a('  v_lshlrev_b32 v28, 16, v30')
    a('  v_and_b32 v29, 0xffff0000, v30')
    a('  v_add_f32 v28, v28, v48')
    a('  v_add_f32 v29, v29, v49')
    a('  v_cvt_pk_bf16_f32 v30, v28, v29')
    a(f'  buffer_store_dword v30, v51, {OUT_}, 0 offen')
    a(f'  s_cmp_lg_u32 {sL}, 0')
    a('  s_cbranch_scc1 L_fin')
    a('  s_mov_b64 exec, 1')
    a(f'  s_mov_b32 {sT0}, {EP2}')
    a(f'  buffer_store_dword {vTagV}, off, {WS_}, 0')
    a(f'  buffer_store_dword {vTagV}, off, {WS_}, {sT0}')
    a('L_fin:')
    if ts:
        a('  s_waitcnt vmcnt(0)')
        a('  s_memrealtime s[64:65]')
        a('  s_waitcnt lgkmcnt(0)')
        for i in range(8):
            a(f'  v_mov_b32 v{24+i}, s{sTs+i}')
        a('  v_mov_b32 v32, s64')
        a('  v_mov_b32 v33, s65')
        a('  s_lshl_b32 s66, s2, 3')
        a(f'  s_add_u32 s66, s66, {sW}')
        a('  s_lshl_b32 s66, s66, 6')
        a(f'  s_add_u32 s66, s66, {TS_OFF}')
        a('  v_mov_b32 v1, s66')
        a('  s_mov_b64 exec, 1')
        a('  global_store_dwordx4 v1, v[24:27], s[28:29]')
        a('  global_store_dwordx4 v1, v[28:31], s[28:29] offset:16')
        a('  global_store_dwordx2 v1, v[32:33], s[28:29] offset:32')
    if 'trace' in exp:
        a('  s_mov_b64 exec, 0xffff')
        a('  s_lshl_b32 s66, s2, 3')
        a(f'  s_add_u32 s66, s66, {sW}')
        a('  s_lshl_b32 s66, s66, 6')
        a(f'  s_add_u32 s66, s66, {TS_OFF + 0x40000}')
        a('  v_lshlrev_b32 v1, 2, v0')
        a('  v_add_u32 v1, s66, v1')
        a('  global_store_dword v1, v252, s[28:29]')
    a('L_end:')
    a('  s_endpgm')
    body = '\n'.join(o)
    if 'stnt' in exp:
        body = '\n'.join((l + ' nt' if ('buffer_store' in l and l.endswith('sc1')) else l) for l in body.split('\n'))
    if 'ldnt' in exp:
        body = '\n'.join((l + ' nt' if ('buffer_load' in l and l.endswith('sc1')) else l) for l in body.split('\n'))
    if 'xnt' in exp:
        body = '\n'.join((l + ' nt' if ('buffer_load' in l and 's[44:47]' in l) else l) for l in body.split('\n'))
    if 'nopub' in exp:
        body = '\n'.join(l for l in body.split('\n') if not ('buffer_store_dwordx4 v[16:19]' in l or 'buffer_store_dwordx4 v[20:23]' in l))
    txt = HEADER + f'''; @launch grid=(256,1,1) block=(512,1,1) lds={LDS_BYTES}
.amdgcn_target "amdgcn-amd-amdhsa--gfx950"
.text
.globl {KNAME}
.p2align 8
.type {KNAME},@function
{body}
.section .rodata,"a"
.p2align 6
.amdhsa_kernel {KNAME}
  .amdhsa_next_free_vgpr 256
  .amdhsa_next_free_sgpr 102
  .amdhsa_accum_offset 256
  .amdhsa_group_segment_fixed_size 0
  .amdhsa_kernarg_size 104
  .amdhsa_user_sgpr_count 2
  .amdhsa_user_sgpr_kernarg_segment_ptr 1
  .amdhsa_system_sgpr_workgroup_id_x 1
  .amdhsa_float_denorm_mode_32 3
.end_amdhsa_kernel
'''
    return txt

if __name__ == '__main__':
    out = sys.argv[1]
    ts = 'ts' in sys.argv[2:]
    kw = {}
    for x in sys.argv[2:]:
        if x.startswith('ev='):
            ts = {n: i for i, n in enumerate(x[3:].split(','))}
        elif '=' in x:
            k, v = x.split('='); kw[k] = int(v)
    open(out, 'w').write(gen(ts=ts, exp=sys.argv[2:], **kw))
    print('lds', LDS_BYTES)
```

```python
import sys, struct, math

NAME = 'parallel_sum__gqa_block_cached__mixer_token_mlp__decode'
KNAME = NAME + '_kernel'

def f32(x):
    return '0x%08x' % struct.unpack('<I', struct.pack('<f', x))[0]

LOG2E = 1.4426950408889634
SCALE = 128 ** -0.5
K0 = math.sqrt(2.0 / math.pi)
GC0 = -2.0 * LOG2E * K0
GC1 = GC0 * 0.044715

HEADER = open('cdna_kernels/%s.s.ref' % NAME).read().split('; Override launch geometry')[0]

L_Q = 0
L_CNT = 512
L_FIN = 516
L_FLAG = 520
L_DONE = 524
L_ZERO = 528
L_TAG = 532
L_ML = 1024
L_Y = 1280
L_OP = 4096
L_POOL = 12288
L_WO = 14336
LDS_BYTES = (L_WO + 37 * 1008 + 64 + 255) // 256 * 256

QBOX = 4096
BLK = 2 << 20
B_O, B_Y, B_B, B_CTR = 0, 2304, 3072, 3840
GML = BLK + 256 * 4096
EP2 = GML + 32 * 256
WS_BYTES = EP2 + 256
TS_OFF = 1 << 20
INVALID = 0x40000000

def gen(ts=False, exp=(), D=3, NSTREAM=2, THR=1, NB1=3, BG=150, P=32, R=6, DX=2, SL1=4, SL2=2):
    o = []
    a = o.append
    NS = 256 - P
    DPPM = ' row_mask:0xf bank_mask:0xf'
    sW = 's3'
    sHKV, sB, sC, sL = 's30', 's31', 's32', 's2'
    sMask = 's33'
    sT0, sT1 = 's34', 's35'
    K_, V_, X_, WQ_, WO_, WS_, OUT_ = [f's[{i}:{i+3}]' for i in range(36, 64, 4)]
    def srd(base, lo, hi, nrec):
        a(f'  s_mov_b32 s{base}, {lo}')
        a(f'  s_and_b32 s{base+1}, {hi}, 0xffff')
        a(f'  s_mov_b32 s{base+2}, {nrec}')
        a(f'  s_mov_b32 s{base+3}, 0x20000')
    sOff = [f's{64+i}' for i in range(6)]
    sScale, sLog2e, sNLog2e, sGC1 = 's70', 's71', 's72', 's73'
    sSame = 's[74:75]'
    sTag, sIdx, sSpin, sB2 = 's76', 's77', 's78', 's79'
    sU = [f's{80+i}' for i in range(14)]
    sForce = 's80'
    sTs = 94
    vKoff, vVoff, vTick, vCnt = 'v1', 'v2', 'v3', 'v4'
    SEL = 5
    vM, vNegM, vLs = 'v13', 'v14', 'v15'
    O, S, AF, T, QF, RING = 16, 20, 24, 40, 48, 64
    vInc, vTagV, vL16, vCtl = 'v255', 'v254', 'v253', 'v252'
    assert D <= 5
    def vr(b, n=4): return f'v[{b}:{b+n-1}]'
    EV = {'start': 0, 'qready': 1, 'loopend': 2, 'hop1': 3}
    if isinstance(ts, dict): EV = ts
    def stamp(name):
        if ts and name in EV:
            i = EV[name]
            a(f'  s_memrealtime s[{sTs+2*i}:{sTs+2*i+1}]')
    def rnd(v):
        a(f'  v_cvt_pk_bf16_f32 {v}, {v}, {v}')
        a(f'  v_and_b32 {v}, 0xffff0000, {v}')
    def selectors(t0, t1, t2, t3):
        a(f'  v_and_b32 {t0}, 1, v0')
        a(f'  v_cmp_eq_u32 vcc, 1, {t0}')
        a(f'  v_mov_b32 {t0}, 0x0c0c0100')
        a(f'  v_mov_b32 {t1}, 0x01000c0c')
        a(f'  v_cndmask_b32 {t0}, {t0}, {t1}, vcc')
        a(f'  v_mov_b32 {t1}, 0x0c0c0302')
        a(f'  v_mov_b32 {t2}, 0x03020c0c')
        a(f'  v_cndmask_b32 {t1}, {t1}, {t2}, vcc')
        a(f'  v_bfe_u32 {t2}, v0, 1, 2')
        a(f'  v_mov_b32 {t3}, 0x0c0c0c0c')
        for d in range(4):
            a(f'  v_cmp_eq_u32 vcc, {d}, {t2}')
            a(f'  s_nop 1')
            a(f'  v_cndmask_b32 v{SEL+d}, {t3}, {t0}, vcc')
            a(f'  v_cndmask_b32 v{SEL+4+d}, {t3}, {t1}, vcc')
    def consts():
        a(f'  s_mov_b32 {sLog2e}, {f32(LOG2E)}')
        a(f'  s_mov_b32 {sNLog2e}, {f32(-LOG2E)}')
        a(f'  v_lshlrev_b32 {vL16}, 4, v0')
    def tagcheck(base, n, lbl_ok, lbl_retry, sl=1, shrink=False):
        tags = [f'v{base+2*k+1}' for k in range(2*n)]
        a(f'  v_max_u32 v35, {tags[0]}, {tags[1]}')
        a(f'  v_min_u32 v36, {tags[0]}, {tags[1]}')
        for k in range(2, 2*n, 2):
            a(f'  v_max3_u32 v35, v35, {tags[k]}, {tags[k+1]}')
            a(f'  v_min3_u32 v36, v36, {tags[k]}, {tags[k+1]}')
        a(f'  v_xor_b32 v35, v35, {vTagV}')
        a(f'  v_xor_b32 v36, v36, {vTagV}')
        a('  v_or_b32 v35, v35, v36')
        a('  v_cmp_ne_u32 vcc, 0, v35')
        a(f'  s_cbranch_vccz {lbl_ok}')
        if shrink:
            a('  s_mov_b64 exec, vcc')
        a(f'  s_sleep {sl}')
        a(f'  s_add_u32 {sSpin}, {sSpin}, 1')
        a(f'  s_cmp_lt_u32 {sSpin}, 0x8000')
        a(f'  s_cbranch_scc1 {lbl_retry}')

    a(f'{KNAME}:')
    a('  s_cmp_ge_u32 s2, 256')
    a('  s_cbranch_scc1 L_end')
    a('  s_load_dwordx16 s[4:19], s[0:1], 0')
    a('  s_load_dwordx8 s[20:27], s[0:1], 64')
    a('  s_load_dwordx2 s[28:29], s[0:1], 96')
    if ts:
        for i in range(8):
            a(f'  s_mov_b32 s{sTs+i}, 0')
    stamp('start')
    a('  v_lshrrev_b32 v1, 6, v0')
    a('  v_and_b32 v0, 63, v0')
    a(f'  v_readfirstlane_b32 {sW}, v1')
    a(f'  s_bfe_u32 {sHKV}, s2, 0x40003')
    a(f'  s_lshr_b32 {sB}, s2, 7')
    a(f'  s_and_b32 {sC}, s2, 7')
    a(f'  s_and_b32 {sIdx}, s2, 127')
    for k, (src, dst) in enumerate([(3, 14), (4, 13), (5, 19), (6, 17), (7, 12)]):
        a(f'  s_bfe_u32 {sT0}, s2, {0x10000 | src}')
        if k == 0:
            a(f'  s_lshl_b32 {sMask}, {sT0}, {dst}')
        else:
            a(f'  s_lshl_b32 {sT0}, {sT0}, {dst}')
            a(f'  s_or_b32 {sMask}, {sMask}, {sT0}')
    a('  v_and_b32 v24, 15, v0')
    a('  v_lshrrev_b32 v25, 4, v0')
    a('  v_lshlrev_b32 v27, 4, v24')
    a(f'  v_mov_b32 {vCtl}, {L_CNT}')
    a(f'  s_cmp_eq_u32 {sW}, 0')
    a('  s_cbranch_scc1 L_helper')

    a('  v_and_b32 v26, 7, v0')
    a('  v_lshlrev_b32 v26, 8, v26')
    a('  v_lshl_add_u32 v26, v25, 4, v26')
    a('  v_bfe_u32 v28, v0, 3, 1')
    a(f'  v_lshl_add_u32 {vKoff}, v28, 15, v26')
    a('  v_bfe_u32 v28, v0, 4, 1')
    a('  v_lshl_add_u32 v26, v28, 10, v27')
    a('  v_lshrrev_b32 v28, 5, v0')
    a(f'  v_lshl_add_u32 {vVoff}, v28, 15, v26')
    a(f'  s_lshr_b32 {sT0}, s2, 3')
    a(f'  s_lshl_b32 {sT0}, {sT0}, 23')
    a('  s_mov_b32 s38, 0x800000')
    a('  s_mov_b32 s42, 0x800000')
    a('  s_mov_b32 s39, 0x20000')
    a('  s_mov_b32 s43, 0x20000')
    a(f'  s_lshl_b32 {sForce}, {sC}, 20')
    a(f'  s_or_b32 {sForce}, {sForce}, {sMask}')
    a(f'  s_sub_u32 {sU[2]}, {sW}, 1')
    a(f'  s_lshl_b32 {sU[2]}, {sU[2]}, 11')
    for d in range(D):
        a(f'  s_and_b32 {sT1}, {sU[2]}, 0xffff8000')
        a(f'  s_add_u32 {sOff[d]}, {sU[2]}, {sT1}')
        a(f'  s_xor_b32 {sOff[d]}, {sOff[d]}, {sForce}')
        if d < D - 1:
            a(f'  s_add_u32 {sU[2]}, {sU[2]}, {7<<11}')
    a('  s_waitcnt lgkmcnt(0)')
    a(f'  s_add_u32 s36, s6, {sT0}')
    a('  s_addc_u32 s37, s7, 0')
    a('  s_and_b32 s37, s37, 0xffff')
    a(f'  s_add_u32 s40, s8, {sT0}')
    a('  s_addc_u32 s41, s9, 0')
    a('  s_and_b32 s41, s41, 0xffff')
    def loadK(slot):
        for n in range(4):
            a(f'  buffer_load_dwordx4 {vr(RING+slot*32+n*4)}, {vKoff}, {K_}, {sOff[slot]} offen offset:{n*64} nt')
    def loadV(slot):
        for n in range(4):
            a(f'  buffer_load_dwordx4 {vr(RING+slot*32+16+n*4)}, {vVoff}, {V_}, {sOff[slot]} offen offset:{n*256} nt')
    a('  s_barrier')
    loadK(0)
    srd(56, 's28', 's29', WS_BYTES)
    srd(52, 's12', 's13', 4096 * 1152)
    consts()
    a(f'  s_mov_b32 {sScale}, {f32(SCALE)}')
    a('  s_mov_b32 s74, 0x00ff00ff')
    a('  s_mov_b32 s75, 0xff00ff00')
    selectors('v26', 'v27', 'v28', 'v29')
    a(f'  s_cmp_le_u32 {sW}, {NSTREAM}')
    a(f'  s_cselect_b32 {sT0}, 2048, 0')
    a(f'  s_cselect_b32 {sT1}, 0, {INVALID}')
    a(f'  s_or_b32 {sForce}, {sForce}, {sT1}')
    a(f'  v_mov_b32 {vInc}, {sT0}')
    a(f'  s_cmp_le_u32 {sW}, {NSTREAM}')
    a(f'  s_cselect_b32 {sT0}, 0, {L_ZERO-L_CNT}')
    a(f'  v_add_u32 {vCnt}, {sT0}, {vCtl}')
    a(f'  v_mov_b32 {vM}, {f32(-1e30)}')
    a(f'  v_mov_b32 {vNegM}, {f32(1e30*LOG2E)}')
    a(f'  v_mov_b32 {vLs}, 0')
    for r in range(4):
        a(f'  v_mov_b32 v{O+r}, 0')
    a('  v_bfe_u32 v26, v0, 3, 1')
    a('  v_lshlrev_b32 v26, 8, v26')
    a('  v_lshl_add_u32 v26, v25, 4, v26')
    for d in range(D):
        if d > 0:
            a(f'  s_waitcnt vmcnt({THR})')
            loadK(d)
        a(f'  s_waitcnt vmcnt({THR})')
        loadV(d)
    stamp('issued')
    a('L_qwait:')
    a(f'  ds_read_b32 v27, {vCtl} offset:{L_FLAG-L_CNT}')
    a('  s_waitcnt lgkmcnt(0)')
    a(f'  v_readfirstlane_b32 {sT0}, v27')
    a(f'  s_cmp_eq_u32 {sT0}, 1')
    a('  s_cbranch_scc1 L_qgot')
    a('  s_sleep 2')
    a('  s_branch L_qwait')
    a('L_qgot:')
    for j in range(4):
        a(f'  ds_read_b128 {vr(QF+4*j)}, v26 offset:{L_Q+64*j}')
    a(f'  ds_read_b32 {vTagV}, {vCtl} offset:{L_TAG-L_CNT}')
    a('  s_waitcnt lgkmcnt(0)')
    stamp('qready')

    rare = []
    NW = 8 * D - 4
    def tile(slot):
        kb = RING + slot * 32
        vb = kb + 16
        t = [f'v{T+i}' for i in range(4)]
        mx, tmp = f'v{T+4}', f'v{T+5}'
        pb = [f'v{T+6}', f'v{T+7}']
        a(f'  s_cmp_ge_u32 {sOff[slot]}, 0x800000')
        a('  s_cbranch_scc1 L_done')
        a(f'  s_waitcnt vmcnt({NW})')
        a('  s_mov_b64 exec, 1')
        a(f'  ds_add_rtn_u32 {vTick}, {vCnt}, {vInc}')
        a('  s_mov_b64 exec, -1')
        for j in range(4):
            c = '0' if j == 0 else vr(S)
            a(f'  v_mfma_f32_16x16x32_bf16 {vr(S)}, {vr(kb+4*j)}, {vr(QF+4*j)}, {c}')
        a('  s_waitcnt lgkmcnt(0)')
        a(f'  v_readfirstlane_b32 {sT0}, {vTick}')
        a(f'  s_cmp_ge_u32 {sT0}, {NS<<11}')
        a(f'  s_cbranch_scc1 L_pool{slot}')
        a(f'  s_and_b32 {sT1}, {sT0}, 0xffff8000')
        a(f'  s_add_u32 {sT0}, {sT0}, {sT1}')
        a(f'  s_xor_b32 {sOff[slot]}, {sT0}, {sForce}')
        a(f'L_pback{slot}:')
        loadK(slot)
        a(f'  v_cvt_pk_bf16_f32 {t[0]}, v{S}, v{S+1}')
        a(f'  v_cvt_pk_bf16_f32 {t[2]}, v{S+2}, v{S+3}')
        def unpack():
            a(f'  v_and_b32 {t[1]}, 0xffff0000, {t[0]}')
            a(f'  v_lshlrev_b32 {t[0]}, 16, {t[0]}')
            a(f'  v_and_b32 {t[3]}, 0xffff0000, {t[2]}')
            a(f'  v_lshlrev_b32 {t[2]}, 16, {t[2]}')
        unpack()
        for i in range(4):
            a(f'  v_mul_f32 {t[i]}, {sScale}, {t[i]}')
        a(f'  v_cvt_pk_bf16_f32 {t[0]}, {t[0]}, {t[1]}')
        a(f'  v_cvt_pk_bf16_f32 {t[2]}, {t[2]}, {t[3]}')
        unpack()
        a(f'  v_max3_f32 {mx}, {t[0]}, {t[1]}, {t[2]}')
        a(f'  v_max_f32 {mx}, {mx}, {t[3]}')
        a(f'  v_cmp_gt_f32 vcc, {mx}, {vM}')
        a(f'  s_cbranch_vccnz L_rare{slot}')
        a(f'L_back{slot}:')
        for i in range(4):
            a(f'  v_fma_f32 {t[i]}, {t[i]}, {sLog2e}, {vNegM}')
        for i in range(4):
            a(f'  v_exp_f32 {t[i]}, {t[i]}')
        a(f'  v_cvt_pk_bf16_f32 {pb[0]}, {t[0]}, {t[1]}')
        a(f'  v_add_f32 {tmp}, {t[0]}, {t[1]}')
        a(f'  v_cvt_pk_bf16_f32 {pb[1]}, {t[2]}, {t[3]}')
        a(f'  v_add_f32 {mx}, {t[2]}, {t[3]}')
        for r in range(4):
            for d in range(4):
                a(f'  v_perm_b32 v{AF+4*r+d}, {pb[r//2]}, {pb[r//2]}, v{SEL+(r&1)*4+d}')
        a(f'  v_add_f32 {tmp}, {tmp}, {mx}')
        a(f'  v_add_f32 {vLs}, {vLs}, {tmp}')
        a(f'  s_waitcnt vmcnt({NW})')
        for r in range(4):
            a(f'  v_mfma_f32_16x16x32_bf16 {vr(O)}, {vr(AF+4*r)}, {vr(vb+4*r)}, {vr(O)}')
        loadV(slot)
        r_ = rare.append
        r_(f'L_rare{slot}:')
        for p in ['v_permlane32_swap_b32', 'v_permlane16_swap_b32']:
            r_(f'  v_mov_b32 {tmp}, {mx}')
            r_('  s_nop 1')
            r_(f'  {p} {tmp}, {mx}')
            r_(f'  v_max_f32 {mx}, {mx}, {tmp}')
        r_(f'  v_max_f32 {mx}, {mx}, {vM}')
        r_(f'  v_sub_f32 {tmp}, {vM}, {mx}')
        r_(f'  v_mul_f32 {tmp}, {sLog2e}, {tmp}')
        r_(f'  v_exp_f32 {tmp}, {tmp}')
        r_(f'  v_mov_b32 {vM}, {mx}')
        r_(f'  v_mul_f32 {vNegM}, {sNLog2e}, {mx}')
        r_(f'  v_mul_f32 {vLs}, {vLs}, {tmp}')
        r_(f'  v_mov_b32_dpp {mx}, {tmp} row_ror:8{DPPM}')
        r_(f'  v_cndmask_b32 {mx}, {mx}, {tmp}, {sSame}')
        for r in range(4):
            r_(f'  v_mul_f32 v{O+r}, v{O+r}, {mx}')
        r_(f'  s_branch L_back{slot}')
        r_(f'L_pool{slot}:')
        r_(f'  s_sub_u32 {sT0}, {sT0}, {NS<<11}')
        r_(f'  s_lshr_b32 {sT0}, {sT0}, 9')
        r_(f'  v_mov_b32 {mx}, {sT0}')
        r_(f'L_pspin{slot}:')
        r_(f'  ds_read_b32 {vTick}, {mx} offset:{L_POOL}')
        r_('  s_waitcnt lgkmcnt(0)')
        r_(f'  v_readfirstlane_b32 {sT1}, {vTick}')
        r_(f'  s_mov_b32 {sOff[slot]}, {sT1}')
        r_(f'  s_cmp_lg_u32 {sT1}, -1')
        r_(f'  s_cbranch_scc1 L_pback{slot}')
        r_('  s_sleep 1')
        r_(f'  s_branch L_pspin{slot}')
    a('.p2align 6')
    a('L_loop:')
    for d in range(D):
        tile(d)
    a('  s_branch L_loop')
    o += rare

    a('.p2align 6')
    a('L_helper:')
    a('  s_setprio 3')
    XA, XB, XF, WQ, GQ = 64, 74, 84, 104, 176
    vXC = 'v73'
    a('  v_bfe_u32 v26, v0, 3, 1')
    a('  v_mul_u32_u24 v26, 1152, v26')
    a('  v_and_b32 v28, 7, v0')
    a('  v_lshl_add_u32 v28, v25, 3, v28')
    a('  v_mad_u32_u24 v28, v28, 36, v26')
    a('  v_mad_u32_u24 v29, v25, 36, v26')
    a('  v_mul_u32_u24 v30, 0x24000, v25')
    a('  v_add_u32 v30, v30, v27')
    a('  v_lshlrev_b32 v31, 1, v0')
    a(f'  v_mov_b32 v32, {(7*D)<<11}')
    a('  v_mov_b32 v33, -1')
    a('  v_mov_b32 v34, 0')
    a('  v_mov_b32 v35, 0')
    a(f'  ds_write_b128 {vCtl}, v[32:35]')
    a(f'  ds_write_b32 {vCtl}, v34 offset:{L_ZERO-L_CNT}')
    sRG, sCG, sI16 = sU[0], sU[1], sU[2]
    a(f'  s_lshl_b32 {sI16}, {sB}, 3')
    a(f'  s_or_b32 {sI16}, {sI16}, {sC}')
    a(f'  s_lshr_b32 {sRG}, {sI16}, 1')
    a(f'  s_and_b32 {sCG}, {sI16}, 1')
    a(f'  s_mul_i32 {sT1}, {sRG}, 144')
    a(f'  s_mul_i32 {sT0}, {sRG}, {72*8192}')
    a(f'  s_lshl_b32 {sU[3]}, {sHKV}, 9')
    a(f'  s_add_u32 {sT0}, {sT0}, {sU[3]}')
    a(f'  s_lshl_b32 {sU[3]}, {sCG}, 8')
    a(f'  s_add_u32 {sT0}, {sT0}, {sU[3]}')
    a('  s_mov_b32 s46, 2304')
    a('  s_mov_b32 s47, 0x20000')
    a(f'  s_mov_b32 s50, {576*8192}')
    a('  s_mov_b32 s51, 0x20000')
    a(f'  s_mov_b32 s58, {WS_BYTES}')
    a('  s_mov_b32 s59, 0x20000')
    a(f'  s_lshl_b32 {sU[3]}, s2, 12')
    a(f'  s_add_u32 {sU[3]}, {sU[3]}, {BLK}')
    a('  s_waitcnt lgkmcnt(0)')
    a('  s_mov_b32 s44, s4')
    a('  s_and_b32 s45, s5, 0xffff')
    a('  s_mov_b32 s48, s10')
    a('  s_and_b32 s49, s11, 0xffff')
    a('  s_mov_b32 s56, s28')
    a('  s_and_b32 s57, s29, 0xffff')
    a(f'  buffer_load_dwordx4 {vr(XA)}, v28, {X_}, 0 offen')
    a(f'  buffer_load_dwordx4 {vr(XA+4)}, v28, {X_}, 0 offen offset:16')
    a(f'  buffer_load_dword v{XA+8}, v28, {X_}, 0 offen offset:32')
    a(f'  buffer_load_dwordx4 {vr(XB)}, v29, {X_}, {sT1} offen')
    a(f'  buffer_load_dwordx4 {vr(XB+4)}, v29, {X_}, {sT1} offen offset:16')
    a(f'  buffer_load_dword v{XB+8}, v29, {X_}, {sT1} offen offset:32')
    for n in range(18):
        a(f'  buffer_load_dwordx4 {vr(WQ+4*n)}, v30, {WQ_}, {sT0} offen nt')
        if n < 17:
            a(f'  s_add_u32 {sT0}, {sT0}, 8192')
    a('  s_barrier')
    a('  s_mov_b64 exec, 1')
    a(f'  buffer_store_dword v34, off, {WS_}, {sU[3]} offset:{B_CTR} sc1')
    a('  s_mov_b64 exec, -1')
    a(f'  s_load_dword {sTag}, s[28:29], 0')
    a(f'  s_add_u32 {sU[4]}, s28, {EP2}')
    a(f'  s_addc_u32 {sU[5]}, s29, 0')
    a(f'  s_load_dword {sSpin}, s[84:85], 0')
    a(f'  s_load_dword {sB2}, s[22:23], 0')
    sFG, sOS = sU[6], sU[7]
    a(f'  s_mul_i32 {sFG}, {sIdx}, 57')
    a(f'  s_lshr_b32 {sFG}, {sFG}, 9')
    a(f'  s_mul_i32 {sT0}, {sFG}, 9')
    a(f'  s_sub_u32 {sOS}, {sIdx}, {sT0}')
    a(f'  s_min_u32 {sFG}, {sFG}, 11')
    a(f'  s_mul_i32 {sT0}, {sB}, 1152')
    a(f'  s_lshl_b32 {sT1}, {sOS}, 7')
    a(f'  s_add_u32 {sT0}, {sT0}, {sT1}')
    a(f'  buffer_load_ushort {vXC}, v31, {X_}, {sT0} offen')
    stamp('issued')
    consts()
    srd(52, 's12', 's13', 4096 * 1152)
    a(f'  s_mov_b32 {sGC1}, {f32(GC1)}')
    selectors('v26', 'v27', 'v28', 'v29')
    a('  v_mov_b32 v32, -1')
    a('  v_mov_b32 v34, -1')
    a('  v_mov_b32 v35, -1')
    a(f'  ds_write_b128 {vL16}, v[32:35] offset:{L_POOL}')
    a(f'  ds_write_b128 {vL16}, v[32:35] offset:{L_POOL+1024}')
    def half_sum(v, t):
        for m in ['quad_perm:[1,0,3,2]', 'quad_perm:[2,3,0,1]', 'row_half_mirror']:
            a('  s_nop 1')
            a(f'  v_add_f32_dpp {v}, {v}, {v} {m}{DPPM}')
        for p in ['v_permlane16_swap_b32', 'v_permlane32_swap_b32']:
            a(f'  v_mov_b32 {t}, {v}')
            a('  s_nop 1')
            a(f'  {p} {t}, {v}')
            a(f'  v_add_f32 {v}, {v}, {t}')
    def ln_stats(mu, rd, t0, t1, t2):
        a(f'  v_add_f32 {t0}, v{XF}, v{XF+1}')
        a(f'  v_add_f32 {t1}, v{XF+2}, v{XF+3}')
        for k in range(4, 18, 2):
            a(f'  v_add_f32 {t0}, {t0}, v{XF+k}')
            a(f'  v_add_f32 {t1}, {t1}, v{XF+k+1}')
        a(f'  v_add_f32 {t0}, {t0}, {t1}')
        half_sum(t0, t1)
        a(f'  v_mul_f32 {mu}, {f32(1.0/576)}, {t0}')
        for k in range(18):
            tt = t1 if k & 1 else t2
            a(f'  v_sub_f32 {tt}, v{XF+k}, {mu}')
            if k == 0:
                a(f'  v_mul_f32 {t0}, {tt}, {tt}')
            else:
                a(f'  v_fmac_f32 {t0}, {tt}, {tt}')
        half_sum(t0, t1)
        a(f'  v_mul_f32 {t0}, {f32(1.0/576)}, {t0}')
        rnd(t0)
        a(f'  v_add_f32 {t0}, {f32(1e-5)}, {t0}')
        rnd(t0)
        a(f'  v_sqrt_f32 {t0}, {t0}')
        a('  s_nop 0')
        rnd(t0)
        a(f'  v_rcp_f32 {rd}, {t0}')
        rnd(mu)
    def norm_pair(lo, hi, dst, mu, rd):
        a(f'  v_sub_f32 {lo}, {lo}, {mu}')
        a(f'  v_sub_f32 {hi}, {hi}, {mu}')
        a(f'  v_cvt_pk_bf16_f32 {lo}, {lo}, {hi}')
        a(f'  v_and_b32 {hi}, 0xffff0000, {lo}')
        a(f'  v_lshlrev_b32 {lo}, 16, {lo}')
        a(f'  v_mul_f32 {lo}, {lo}, {rd}')
        a(f'  v_mul_f32 {hi}, {hi}, {rd}')
        a(f'  v_cvt_pk_bf16_f32 {dst}, {lo}, {hi}')
    a('  s_waitcnt vmcnt(23)')
    stamp('xarr')
    for k in range(9):
        a(f'  v_lshlrev_b32 v{XF+2*k}, 16, v{XA+k}')
        a(f'  v_and_b32 v{XF+2*k+1}, 0xffff0000, v{XA+k}')
    vMu, vRd = 'v32', 'v33'
    a('  s_waitcnt lgkmcnt(0)')
    ln_stats(vMu, vRd, 'v34', 'v35', 'v36')
    a('  s_waitcnt vmcnt(20)')
    a(f'  s_mul_i32 {sTag}, {sTag}, 1664525')
    a(f'  s_add_u32 {sTag}, {sTag}, 1013904223')
    a(f'  s_mul_i32 {sSpin}, {sSpin}, 0x9e3779b4')
    a(f'  s_add_u32 {sTag}, {sTag}, {sSpin}')
    a(f'  v_mov_b32 {vTagV}, {sTag}')
    for k in range(9):
        r = XB + k
        a(f'  v_lshlrev_b32 v34, 16, v{r}')
        a(f'  v_and_b32 v35, 0xffff0000, v{r}')
        norm_pair('v34', 'v35', f'v{r}', vMu, vRd)
        for hh in range(2):
            af = 24 + hh * 4
            for d in range(4):
                a(f'  v_perm_b32 v{af+d}, v{r}, v{r}, v{SEL+hh*4+d}')
        for hh in range(2):
            n = 2 * k + hh
            af = 24 + hh * 4
            if hh == 0:
                a(f'  s_waitcnt vmcnt({18 - 2*k})')
                a('  s_nop 0')
            c = '0' if n == 0 else vr(16)
            a(f'  v_mfma_f32_16x16x32_bf16 {vr(16)}, {vr(af)}, {vr(WQ+4*n)}, {c}')
    a('  v_and_b32 v34, 15, v0')
    a('  v_lshlrev_b32 v34, 6, v34')
    a('  v_bfe_u32 v35, v0, 4, 1')
    a('  v_lshl_add_u32 v34, v35, 5, v34')
    a('  v_lshrrev_b32 v35, 5, v0')
    a('  v_lshl_add_u32 v34, v35, 10, v34')
    a(f'  s_lshl_b32 {sT0}, {sHKV}, 4')
    a(f'  s_add_u32 {sT1}, {sT0}, {sI16}')
    a(f'  s_lshl_b32 {sT1}, {sT1}, 11')
    a(f'  s_add_u32 {sT1}, {sT1}, {QBOX}')
    a(f'  v_mov_b32 v21, {sTag}')
    a(f'  v_mov_b32 v23, {sTag}')
    a('  v_mov_b32 v22, v19')
    a('  v_mov_b32 v20, v18')
    a('  v_mov_b32 v18, v17')
    a(f'  v_mov_b32 v17, {sTag}')
    a(f'  v_mov_b32 v19, {sTag}')
    a('  s_waitcnt vmcnt(0)')
    a(f'  buffer_store_dwordx4 v[16:19], v34, {WS_}, {sT1} offen sc1')
    a(f'  buffer_store_dwordx4 v[20:23], v34, {WS_}, {sT1} offen offset:16 sc1')
    stamp('qpub')
    sMu1, sRd1 = sU[8], sU[9]
    a(f'  s_lshl_b32 {sU[3]}, {sB}, 3')
    a(f'  v_readlane_b32 {sMu1}, {vMu}, {sU[3]}')
    a(f'  v_readlane_b32 {sRd1}, {vRd}, {sU[3]}')
    for k in range(9):
        norm_pair(f'v{XF+2*k}', f'v{XF+2*k+1}', 'v34', vMu, vRd)
        a(f'  v_lshlrev_b32 v{XF+2*k}, 16, v34')
        a(f'  v_and_b32 v{XF+2*k+1}, 0xffff0000, v34')
    ln_stats(vMu, vRd, 'v34', 'v35', 'v36')
    vH = 'v37'
    a(f'  v_lshlrev_b32 {vH}, 16, {vXC}')
    a(f'  v_subrev_f32 {vH}, {sMu1}, {vH}')
    rnd(vH)
    a(f'  v_mul_f32 {vH}, {sRd1}, {vH}')
    rnd(vH)
    a(f'  v_readlane_b32 {sMu1}, {vMu}, {sU[3]}')
    a(f'  v_readlane_b32 {sRd1}, {vRd}, {sU[3]}')
    a('  s_nop 1')
    a(f'  v_subrev_f32 {vH}, {sMu1}, {vH}')
    rnd(vH)
    a(f'  v_mul_f32 {vH}, {sRd1}, {vH}')
    rnd(vH)
    vBacc, vGC0 = 'v39', 'v40'
    a(f'  v_mov_b32 {vBacc}, 0')
    a(f'  v_mov_b32 {vGC0}, {f32(GC0)}')
    sBo, sCnt, sLim = 's36', 's39', 's40'
    a(f'  s_mul_i32 {sBo}, {sFG}, 768')
    a(f'  s_mov_b32 {sCnt}, 0')
    a(f'  s_mov_b32 {sLim}, {NB1}')
    a('L_bloop:')
    a(f'  s_load_dwordx4 s[80:83], s[16:17], {sBo}')
    a(f'  s_load_dwordx4 s[84:87], s[18:19], {sBo}')
    a(f'  s_load_dwordx4 s[88:91], s[20:21], {sBo}')
    a('  s_waitcnt lgkmcnt(0)')
    for k in range(4):
        x0, x1, y0, y1, pk = 'v42', 'v43', 'v44', 'v45', 'v46'
        a(f'  s_lshl_b32 s64, s{80+k}, 16')
        a(f'  s_and_b32 s65, s{80+k}, 0xffff0000')
        a(f'  s_lshl_b32 s66, s{84+k}, 16')
        a(f'  s_and_b32 s67, s{84+k}, 0xffff0000')
        a(f'  s_lshl_b32 s68, s{88+k}, 16')
        a(f'  s_and_b32 s69, s{88+k}, 0xffff0000')
        a(f'  v_mul_f32 {x0}, s64, {vH}')
        a(f'  v_mul_f32 {x1}, s65, {vH}')
        a(f'  v_cvt_pk_bf16_f32 {pk}, {x0}, {x1}')
        a(f'  v_lshlrev_b32 {x0}, 16, {pk}')
        a(f'  v_and_b32 {x1}, 0xffff0000, {pk}')
        a(f'  v_add_f32 {x0}, s66, {x0}')
        a(f'  v_add_f32 {x1}, s67, {x1}')
        a(f'  v_cvt_pk_bf16_f32 {pk}, {x0}, {x1}')
        a(f'  v_lshlrev_b32 {x0}, 16, {pk}')
        a(f'  v_and_b32 {x1}, 0xffff0000, {pk}')
        a(f'  v_mul_f32 {y0}, {x0}, {x0}')
        a(f'  v_mul_f32 {y1}, {x1}, {x1}')
        a(f'  v_fma_f32 {y0}, {y0}, {sGC1}, {vGC0}')
        a(f'  v_fma_f32 {y1}, {y1}, {sGC1}, {vGC0}')
        a(f'  v_mul_f32 {y0}, {y0}, {x0}')
        a(f'  v_mul_f32 {y1}, {y1}, {x1}')
        a(f'  v_exp_f32 {y0}, {y0}')
        a(f'  v_exp_f32 {y1}, {y1}')
        a(f'  v_add_f32 {y0}, 1.0, {y0}')
        a(f'  v_add_f32 {y1}, 1.0, {y1}')
        a(f'  v_rcp_f32 {y0}, {y0}')
        a(f'  v_rcp_f32 {y1}, {y1}')
        a(f'  v_mul_f32 {y0}, {y0}, {x0}')
        a(f'  v_mul_f32 {y1}, {y1}, {x1}')
        a(f'  v_cvt_pk_bf16_f32 {pk}, {y0}, {y1}')
        a(f'  v_lshlrev_b32 {x0}, 16, {pk}')
        a(f'  v_and_b32 {x1}, 0xffff0000, {pk}')
        a(f'  v_fmac_f32 {vBacc}, s68, {x0}')
        a(f'  v_fmac_f32 {vBacc}, s69, {x1}')
    a(f'  s_add_u32 {sBo}, {sBo}, 16')
    a(f'  s_add_u32 {sCnt}, {sCnt}, 1')
    a(f'  s_cmp_lt_u32 {sCnt}, {sLim}')
    a('  s_cbranch_scc1 L_bloop')
    a(f'  s_cmp_eq_u32 {sLim}, 48')
    a('  s_cbranch_scc1 L_bdone')
    a('  v_and_b32 v34, 31, v0')
    a('  v_lshlrev_b32 v34, 5, v34')
    a('  v_lshrrev_b32 v35, 5, v0')
    a('  v_lshl_add_u32 v34, v35, 11, v34')
    a(f'  s_lshl_b32 {sT0}, {sHKV}, 15')
    a(f'  s_lshl_b32 {sT1}, {sB}, 10')
    a(f'  s_add_u32 {sT0}, {sT0}, {sT1}')
    a(f'  s_add_u32 {sT0}, {sT0}, {QBOX}')
    a(f'  s_mov_b32 {sSpin}, 0')
    stamp('q0')
    a('L_pollq:')
    a(f'  s_mov_b32 {sT1}, {sT0}')
    for k in range(8):
        a(f'  buffer_load_dwordx4 {vr(GQ+8*k)}, v34, {WS_}, {sT1} offen sc1')
        a(f'  buffer_load_dwordx4 {vr(GQ+8*k+4)}, v34, {WS_}, {sT1} offen offset:16 sc1')
        if k < 7:
            a(f'  s_add_u32 {sT1}, {sT1}, 4096')
    a('  s_waitcnt vmcnt(0)')
    tagcheck(GQ, 16, 'L_gotq', 'L_pollq', 16)
    a('L_gotq:')
    for k in range(1, 8):
        for r in range(4):
            a(f'  v_add_f32 v{GQ+2*r}, v{GQ+2*r}, v{GQ+8*k+2*r}')
    a(f'  v_cvt_pk_bf16_f32 v16, v{GQ}, v{GQ+2}')
    a(f'  v_cvt_pk_bf16_f32 v17, v{GQ+4}, v{GQ+6}')
    a('  v_lshlrev_b32 v34, 3, v0')
    a(f'  ds_write_b64 v34, v[16:17] offset:{L_Q}')
    a('  v_mov_b32 v35, 1')
    a(f'  ds_write_b32 {vCtl}, {vTagV} offset:{L_TAG-L_CNT}')
    a('  s_waitcnt lgkmcnt(0)')
    a(f'  ds_write_b32 {vCtl}, v35 offset:{L_FLAG-L_CNT}')
    stamp('qready')
    a('  s_setprio 0')
    a(f'  s_mov_b32 {sLim}, 48')
    a('  s_branch L_bloop')
    a('L_bdone:')
    a(f'  s_lshl_b32 {sT1}, {sL}, 12')
    a(f'  s_add_u32 {sT1}, {sT1}, {BLK}')
    a(f'  s_cmp_ge_u32 {sIdx}, 108')
    a('  s_cbranch_scc1 L_nobst')
    a(f'  v_mov_b32 v42, {vBacc}')
    a(f'  v_mov_b32 v43, {vTagV}')
    a('  v_lshlrev_b32 v34, 3, v0')
    a(f'  buffer_store_dwordx2 v[42:43], v34, {WS_}, {sT1} offen offset:{B_B} sc1')
    a('L_nobst:')
    stamp('bdone')
    def wait_cnt(lbl, val, sl):
        a(f'{lbl}:')
        a(f'  ds_read_b32 v35, {vCtl}')
        a(f'  s_sleep {sl}')
        a('  s_waitcnt lgkmcnt(0)')
        a(f'  v_readfirstlane_b32 {sT0}, v35')
        a(f'  s_cmp_lt_u32 {sT0}, {val}')
        a(f'  s_cbranch_scc1 {lbl}')
    a(f'  s_lshl_b32 {sT0}, {sC}, 1')
    a(f'  s_add_u32 {sT0}, {sT0}, {sB}')
    a(f'  s_cmp_lg_u32 {sT0}, {sHKV}')
    a('  s_cbranch_scc1 L_tickets')
    wait_cnt('L_bgwait', BG << 11, 32)
    a(f'  s_mul_i32 {sT0}, {sC}, 72')
    a(f'  v_lshl_add_u32 v34, v0, 1, {sT0}')
    a('  v_lshrrev_b32 v42, 6, v34')
    a('  v_lshlrev_b32 v42, 12, v42')
    a('  v_and_b32 v43, 63, v34')
    a('  v_lshl_add_u32 v42, v43, 3, v42')
    a('  v_lshlrev_b32 v51, 1, v34')
    a(f'  s_mul_i32 {sT1}, {sB}, 1152')
    a(f'  v_add_u32 v51, {sT1}, v51')
    a(f'  s_lshl_b32 {sT0}, {sB}, 19')
    a(f'  s_add_u32 {sT0}, {sT0}, {BLK}')
    a('  s_mov_b32 exec_hi, 0xf')
    a(f'  buffer_load_dword v50, v51, {X_}, 0 offen')
    a(f'  s_mov_b32 {sSpin}, 0')
    a('L_pollb:')
    a(f'  s_mov_b32 {sT1}, {sT0}')
    for k in range(12):
        a(f'  buffer_load_dwordx4 {vr(GQ+4*k)}, v42, {WS_}, {sT1} offen offset:{B_B} sc1')
        if k < 11:
            a(f'  s_add_u32 {sT1}, {sT1}, {9*4096}')
    a('  s_waitcnt vmcnt(0)')
    tagcheck(GQ, 12, 'L_gotb', 'L_pollb', 64)
    a('L_gotb:')
    for k in range(1, 12):
        a(f'  v_add_f32 v{GQ}, v{GQ}, v{GQ+4*k}')
        a(f'  v_add_f32 v{GQ+2}, v{GQ+2}, v{GQ+4*k+2}')
    a(f'  s_lshl_b32 {sB2}, {sB2}, 16')
    a(f'  v_cvt_pk_bf16_f32 v34, v{GQ}, v{GQ+2}')
    a('  v_lshlrev_b32 v48, 16, v34')
    a('  v_and_b32 v49, 0xffff0000, v34')
    a(f'  v_add_f32 v48, {sB2}, v48')
    a(f'  v_add_f32 v49, {sB2}, v49')
    a('  v_cvt_pk_bf16_f32 v34, v48, v49')
    a('  v_lshlrev_b32 v48, 16, v34')
    a('  v_and_b32 v49, 0xffff0000, v34')
    a('  s_mov_b64 exec, -1')
    a('L_tickets:')
    sF, sPend, sEnd = 's36', 's37', 's38'
    sN = ['s80', 's81', 's82', 's83']
    vK = ['v52', 'v53', 'v54', 'v55']
    vA = ['v56', 'v57', 'v58', 'v59']
    a(f'  s_and_b32 {sT0}, s2, 0xf8')
    a(f'  s_lshl_b32 s40, {sT0}, 12')
    a(f'  s_add_u32 s40, s40, {BLK}')
    a(f'  s_mov_b32 {sF}, 0')
    a(f'  s_mov_b32 {sPend}, 0')
    a(f'  s_mov_b32 {sEnd}, 0')
    for k in range(4):
        a(f'  s_mov_b32 {sN[k]}, 0')
        a(f'  v_mov_b32 {vK[k]}, 0')
    a('  s_waitcnt vmcnt(0)')
    wait_cnt('L_tkwait', (NS - R - 2) << 11, 8)
    a('  s_setprio 3')
    a('L_tkloop:')
    for k in range(4):
        a('  s_waitcnt vmcnt(3)')
        a(f'  ds_read_b32 v35, {vCtl}')
        a(f'  v_readfirstlane_b32 {sT0}, {vK[k]}')
        a(f'  s_sub_u32 {sPend}, {sPend}, {sN[k]}')
        a(f'  s_add_u32 {sT1}, {sT0}, {sN[k]}')
        a(f'  s_min_u32 {sT1}, {sT1}, {8*P}')
        a(f'  s_min_u32 s41, {sT0}, {8*P}')
        a(f'  s_sub_u32 s41, {sT1}, s41')
        a(f'  s_cmp_ge_u32 {sT1}, {8*P}')
        a(f'  s_cselect_b32 {sEnd}, 1, {sEnd}')
        a('  s_cmp_eq_u32 s41, 0')
        a(f'  s_cbranch_scc1 L_tkn{k}')
        a(f'  v_add_u32 v42, {sT0}, v0')
        a('  v_lshrrev_b32 v43, 3, v42')
        a(f'  v_add_u32 v43, {NS}, v43')
        a('  v_lshlrev_b32 v43, 11, v43')
        a('  v_and_b32 v44, 0xffff8000, v43')
        a('  v_add_u32 v43, v43, v44')
        a(f'  v_xor_b32 v43, {sMask}, v43')
        a('  v_and_b32 v42, 7, v42')
        a('  v_lshl_add_u32 v43, v42, 20, v43')
        a(f'  v_add_u32 v44, {sF}, v0')
        a('  v_lshlrev_b32 v44, 2, v44')
        a('  s_bfm_b64 exec, s41, 0')
        a(f'  ds_write_b32 v44, v43 offset:{L_POOL}')
        a('  s_mov_b64 exec, -1')
        a(f'  s_add_u32 {sF}, {sF}, s41')
        a(f'L_tkn{k}:')
        a(f'  s_cmp_eq_u32 {sEnd}, 1')
        a(f'  s_cselect_b32 {sT1}, {sPend}, 1')
        a(f'  s_cmp_eq_u32 {sT1}, 0')
        a('  s_cbranch_scc1 L_tkend')
        a('  s_waitcnt lgkmcnt(0)')
        a(f'  v_readfirstlane_b32 {sT0}, v35')
        a(f'  s_lshr_b32 {sT0}, {sT0}, 11')
        a(f'  s_sub_u32 {sT0}, {sT0}, {NS - R}')
        a(f'  s_sub_u32 {sT0}, {sT0}, {sF}')
        a(f'  s_sub_u32 {sT0}, {sT0}, {sPend}')
        a(f'  s_max_i32 {sT0}, {sT0}, 0')
        a(f'  s_min_i32 {sT0}, {sT0}, 2')
        a(f'  s_cmp_eq_u32 {sEnd}, 1')
        a(f'  s_cselect_b32 {sN[k]}, 0, {sT0}')
        a(f'  s_add_u32 {sPend}, {sPend}, {sN[k]}')
        a(f'  v_mov_b32 {vK[k]}, {sN[k]}')
        a(f'  s_cmp_eq_u32 {sN[k]}, 0')
        a(f'  s_cselect_b32 {sT1}, {INVALID}, s40')
        a('  s_mov_b64 exec, 1')
        a(f'  buffer_atomic_add {vK[k]}, off, {WS_}, {sT1} offset:{B_CTR} sc0')
        a('  s_mov_b64 exec, -1')
        a('  s_sleep 2')
    a('  s_branch L_tkloop')
    a('L_tkend:')
    a(f'  v_add_u32 v44, {sF}, v0')
    a('  v_lshlrev_b32 v44, 2, v44')
    a(f'  v_mov_b32 v43, {INVALID}')
    a(f'  ds_write_b32 v44, v43 offset:{L_POOL}')
    a(f'  s_add_u32 {sT0}, {sF}, {NS - DX}')
    a(f'  s_lshl_b32 {sT0}, {sT0}, 11')
    a(f'  v_mov_b32 v43, {sT0}')
    a(f'  ds_write_b32 {vCtl}, v43 offset:{L_FIN-L_CNT}')
    stamp('poolend')
    a('  s_waitcnt vmcnt(0) lgkmcnt(0)')
    E, WOF = 64, 128
    a('  v_lshrrev_b32 v24, 5, v0')
    a('  v_lshlrev_b32 v24, 6, v24')
    a('  v_lshlrev_b32 v25, 5, v0')
    for r in (29, 31, 33, 35, 37, 39):
        a(f'  v_mov_b32 v{r}, {vTagV}')
    a(f'  s_lshl_b32 {sT1}, {sL}, 12')
    a(f'  s_add_u32 {sT1}, {sT1}, {BLK}')
    a(f'  s_lshl_b32 s41, {sL}, 5')
    a(f'  s_add_u32 s41, s41, {GML}')
    a('L_dwait:')
    a(f'  ds_read_b32 v26, {vCtl} offset:{L_DONE-L_CNT}')
    a('  s_waitcnt lgkmcnt(0)')
    a(f'  v_readfirstlane_b32 {sT0}, v26')
    a(f'  s_cmp_lt_u32 {sT0}, 7')
    a('  s_cbranch_scc1 L_dwait')
    ML = E + 32
    for k in range(4):
        a(f'  ds_read_b128 {vr(ML+4*k)}, v24 offset:{L_ML+16*k}')
    for k in range(1, 8):
        a(f'  ds_read_b128 {vr(E+4*k)}, {vL16} offset:{L_OP+1024*k}')
    a('  s_waitcnt lgkmcnt(7)')
    a(f'  v_max3_f32 v36, v{ML+2}, v{ML+4}, v{ML+6}')
    a(f'  v_max3_f32 v36, v36, v{ML+8}, v{ML+10}')
    a(f'  v_max3_f32 v36, v36, v{ML+12}, v{ML+14}')
    a(f'  v_mul_f32 v26, {sNLog2e}, v36')
    for k in range(1, 8):
        a(f'  v_fma_f32 v{ML+2*k}, v{ML+2*k}, {sLog2e}, v26')
    for k in range(1, 8):
        a(f'  v_exp_f32 v{ML+2*k}, v{ML+2*k}')
    a(f'  v_mul_f32 v38, v{ML+2}, v{ML+3}')
    for k in range(2, 8):
        a(f'  v_fmac_f32 v38, v{ML+2*k}, v{ML+2*k+1}')
    a('  s_waitcnt lgkmcnt(0)')
    for r in range(4):
        a(f'  v_mul_f32 v{28+2*r}, v{ML+2}, v{E+4+r}')
    for k in range(2, 8):
        for r in range(4):
            a(f'  v_fmac_f32 v{28+2*r}, v{ML+2*k}, v{E+4*k+r}')
    a(f'  buffer_store_dwordx4 v[28:31], v25, {WS_}, {sT1} offen sc1')
    a(f'  buffer_store_dwordx4 v[32:35], v25, {WS_}, {sT1} offen offset:16 sc1')
    a('  v_lshrrev_b32 v24, 2, v24')
    a('  s_mov_b32 exec_lo, 1')
    a('  s_mov_b32 exec_hi, 1')
    a(f'  buffer_store_dwordx4 v[36:39], v24, {WS_}, s41 offen sc1')
    a('  s_mov_b64 exec, -1')
    stamp('pub1')
    a('  s_branch L_tail')

    a('.p2align 6')
    a('L_done:')
    stamp('loopend')
    tmp = f'v{T}'
    for p in ['v_permlane32_swap_b32', 'v_permlane16_swap_b32']:
        a(f'  v_mov_b32 {tmp}, {vLs}')
        a('  s_nop 1')
        a(f'  {p} {tmp}, {vLs}')
        a(f'  v_add_f32 {vLs}, {vLs}, {tmp}')
    a('  v_and_b32 v24, 15, v0')
    a('  v_lshlrev_b32 v24, 5, v24')
    a('  v_bfe_u32 v25, v0, 4, 1')
    a('  v_lshl_add_u32 v24, v25, 4, v24')
    a('  v_lshrrev_b32 v25, 5, v0')
    a('  v_lshl_add_u32 v24, v25, 9, v24')
    a(f'  s_lshl_b32 {sT0}, {sW}, 10')
    a(f'  v_add_u32 v24, {sT0}, v24')
    a(f'  ds_write_b128 v24, {vr(O)} offset:{L_OP}')
    a('  v_bfe_u32 v24, v0, 3, 1')
    a('  v_lshlrev_b32 v24, 6, v24')
    a(f'  s_lshl_b32 {sT0}, {sW}, 3')
    a(f'  v_add_u32 v24, {sT0}, v24')
    a(f'  v_mov_b32 v26, {vM}')
    a(f'  v_mov_b32 v27, {vLs}')
    a('  v_mov_b32 v28, 1')
    a('  s_mov_b64 exec, 0x101')
    a(f'  ds_write_b64 v24, v[26:27] offset:{L_ML}')
    a('  s_mov_b64 exec, 1')
    a('  s_waitcnt lgkmcnt(0)')
    a(f'  ds_add_u32 {vCtl}, v28 offset:{L_DONE-L_CNT}')
    a('  s_mov_b64 exec, -1')
    a(f'  s_cmp_lg_u32 {sW}, 3')
    a('  s_cbranch_scc1 L_nodma')
    a('  v_mul_u32_u24 v34, 57, v0')
    a('  v_lshrrev_b32 v34, 9, v34')
    a('  v_mul_u32_u24 v35, 9, v34')
    a('  v_sub_u32 v35, v0, v35')
    a('  v_lshlrev_b32 v35, 4, v35')
    a('  v_mul_u32_u24 v34, 1152, v34')
    a('  v_add_u32 v34, v34, v35')
    a(f'  s_mul_i32 s64, {sHKV}, {256*1152}')
    a(f'  s_mul_i32 {sT1}, {sC}, 144')
    a(f'  s_add_u32 s64, s64, {sT1}')
    a(f'  s_mov_b32 s65, {L_WO}')
    a('L_fwait:')
    a(f'  ds_read_b64 v[36:37], {vCtl}')
    a('  s_sleep 4')
    a('  s_waitcnt lgkmcnt(0)')
    a(f'  v_readfirstlane_b32 {sT0}, v36')
    a(f'  v_readfirstlane_b32 {sT1}, v37')
    a(f'  s_cmp_lt_u32 {sT0}, {sT1}')
    a('  s_cbranch_scc1 L_fwait')
    stamp('dma0')
    a('L_dmaloop:')
    a('  s_mov_b32 m0, s65')
    a('  s_add_u32 s65, s65, 1008')
    a(f'  buffer_load_dwordx4 v34, {WO_}, s64 offen nt lds')
    a(f'  s_add_u32 s64, s64, {7*1152}')
    a(f'  s_cmp_lt_u32 s65, {L_WO + 37*1008}')
    a('  s_cbranch_scc1 L_dmaloop')
    a('L_nodma:')
    a('  s_waitcnt vmcnt(0)')
    stamp('dma1')

    a('L_tail:')
    if 'notail' in exp:
        a('  s_branch L_fin')
    a(f'  s_lshl_b32 {sT1}, {sL}, 12')
    a(f'  s_add_u32 {sT1}, {sT1}, {BLK}')
    a('  v_lshrrev_b32 v24, 4, v0')
    a('  v_mul_u32_u24 v24, 1152, v24')
    a('  v_bfe_u32 v25, v0, 2, 2')
    a('  v_mul_u32_u24 v25, 144, v25')
    a('  v_and_b32 v26, 3, v0')
    a('  v_lshlrev_b32 v26, 3, v26')
    a('  v_add3_u32 v24, v24, v25, v26')
    a(f'  s_mul_i32 {sT0}, {sW}, 4608')
    a(f'  v_add_u32 v24, {sT0}, v24')
    a('  v_and_b32 v25, 7, v0')
    a('  v_lshlrev_b32 v27, 12, v25')
    a('  v_lshlrev_b32 v25, 5, v25')
    a('  v_lshrrev_b32 v26, 3, v0')
    a('  v_lshl_add_u32 v26, v26, 5, v27')
    a(f'  s_and_b32 {sT0}, {sT1}, 0xffff8000')
    a(f'  s_lshl_b32 s64, {sW}, 8')
    a(f'  s_add_u32 s64, s64, {sT0}')
    a(f'  s_and_b32 s65, {sL}, 0xf8')
    a('  s_lshl_b32 s65, s65, 5')
    a(f'  s_add_u32 s65, s65, {GML}')
    a(f'  s_lshr_b32 {sT0}, {sW}, 2')
    a(f'  s_lshl_b32 {sT0}, {sT0}, 4')
    a(f'  s_add_u32 s65, s65, {sT0}')
    a(f'  s_mov_b32 {sSpin}, 0')
    a(f'  s_mul_i32 {sT0}, {sW}, 320')
    a('  v_lshlrev_b32 v44, 2, v0')
    a(f'  v_add_u32 v44, {sT0}, v44')
    a('  s_barrier')
    stamp('barx')
    for ct in range(5):
        a(f'  ds_read_b64_tr_b16 {vr(WOF+4*ct,2)}, v24 offset:{L_WO+ct*32}')
        a(f'  ds_read_b64_tr_b16 {vr(WOF+4*ct+2,2)}, v24 offset:{L_WO+ct*32+4*144}')
    a('L_poll1:')
    a(f'  buffer_load_dwordx4 {vr(E)}, v26, {WS_}, s64 offen sc1')
    a(f'  buffer_load_dwordx4 {vr(E+4)}, v26, {WS_}, s64 offen offset:16 sc1')
    a(f'  buffer_load_dwordx4 {vr(E+8)}, v25, {WS_}, s65 offen sc1')
    a('  s_waitcnt vmcnt(0)')
    tagcheck(E, 3, 'L_got1', 'L_poll1', SL1, shrink=True)
    a('L_got1:')
    a('  s_mov_b64 exec, -1')
    stamp('hop1')
    R8 = ['quad_perm:[1,0,3,2]', 'quad_perm:[2,3,0,1]', 'row_half_mirror']
    vm, vl = f'v{E+8}', f'v{E+10}'
    od = [f'v{E+2*r}' for r in range(4)]
    a(f'  v_mov_b32 v34, {vm}')
    for m in R8:
        a('  s_nop 1')
        a(f'  v_max_f32_dpp v34, v34, v34 {m}{DPPM}')
    a(f'  v_sub_f32 {vm}, {vm}, v34')
    a(f'  v_mul_f32 {vm}, {sLog2e}, {vm}')
    a(f'  v_exp_f32 {vm}, {vm}')
    a('  s_nop 0')
    a(f'  v_mul_f32 {vl}, {vl}, {vm}')
    for r in range(4):
        a(f'  v_mul_f32 {od[r]}, {od[r]}, {vm}')
    for m in R8:
        a(f'  v_add_f32_dpp {vl}, {vl}, {vl} {m}{DPPM}')
        for r in range(4):
            a(f'  v_add_f32_dpp {od[r]}, {od[r]}, {od[r]} {m}{DPPM}')
    a(f'  v_rcp_f32 {vl}, {vl}')
    a('  s_nop 0')
    for r in range(4):
        a(f'  v_mul_f32 {od[r]}, {od[r]}, {vl}')
    a(f'  v_cvt_pk_bf16_f32 v40, {od[0]}, {od[1]}')
    a(f'  v_cvt_pk_bf16_f32 v41, {od[2]}, {od[3]}')
    a('  s_nop 1')
    a(f'  v_mov_b32_dpp v42, v40 row_ror:8{DPPM}')
    a(f'  v_mov_b32_dpp v43, v41 row_ror:8{DPPM}')
    a('  s_waitcnt lgkmcnt(0)')
    a('  s_nop 0')
    for ct in range(5):
        a(f'  v_mfma_f32_16x16x32_bf16 {vr(E+16+4*ct)}, v[40:43], {vr(WOF+4*ct)}, 0')
    a('  s_mov_b64 exec, 0xffff')
    a('  s_nop 7')
    for ct in range(5):
        a(f'  ds_write_b32 v44, v{E+16+4*ct} offset:{L_Y+64*ct}')
    a('  s_mov_b64 exec, -1')
    a('  s_waitcnt lgkmcnt(0)')
    a('  s_barrier')
    a(f'  s_cmp_lg_u32 {sW}, 0')
    a('  s_cbranch_scc1 L_fin')
    a('  v_lshlrev_b32 v24, 3, v0')
    a('  s_mov_b32 exec_hi, 0xf')
    for k in range(8):
        a(f'  ds_read_b64 {vr(E+2*k,2)}, v24 offset:{L_Y+320*k}')
    a(f'  v_mov_b32 v29, {vTagV}')
    a(f'  v_mov_b32 v31, {vTagV}')
    a('  s_waitcnt lgkmcnt(6)')
    a(f'  v_add_f32 v28, v{E}, v{E+2}')
    a(f'  v_add_f32 v30, v{E+1}, v{E+3}')
    for k in range(2, 8):
        a(f'  s_waitcnt lgkmcnt({7-k})')
        a(f'  v_add_f32 v28, v28, v{E+2*k}')
        a(f'  v_add_f32 v30, v30, v{E+2*k+1}')
    a(f'  buffer_store_dwordx4 v[28:31], {vL16}, {WS_}, {sT1} offen offset:{B_Y} sc1')
    stamp('pub2')
    a(f'  s_lshl_b32 {sT0}, {sC}, 1')
    a(f'  s_add_u32 {sT0}, {sT0}, {sB}')
    a(f'  s_cmp_lg_u32 {sT0}, {sHKV}')
    a('  s_cbranch_scc1 L_fin')
    srd(60, 's24', 's25', 2304)
    a(f'  s_mul_i32 {sT0}, {sC}, 144')
    a(f'  s_mul_i32 {sT1}, {sB}, 1152')
    a(f'  s_add_u32 {sT0}, {sT0}, {sT1}')
    a(f'  v_lshl_add_u32 v51, v0, 2, {sT0}')
    a(f'  s_lshl_b32 {sT0}, {sB}, 7')
    a(f'  s_add_u32 {sT0}, {sT0}, {sC}')
    a(f'  s_lshl_b32 {sT0}, {sT0}, 12')
    a(f'  s_add_u32 {sT0}, {sT0}, {BLK}')
    a(f'  s_mov_b32 {sSpin}, 0')
    a('L_poll2:')
    a(f'  s_mov_b32 {sT1}, {sT0}')
    for k in range(16):
        a(f'  buffer_load_dwordx4 {vr(E+4*k)}, {vL16}, {WS_}, {sT1} offen offset:{B_Y} sc1')
        if k < 15:
            a(f'  s_add_u32 {sT1}, {sT1}, 0x8000')
    a('  s_waitcnt vmcnt(0)')
    tagcheck(E, 16, 'L_got2', 'L_poll2', SL2)
    a('L_got2:')
    for k in range(1, 16):
        a(f'  v_add_f32 v{E}, v{E}, v{E+4*k}')
        a(f'  v_add_f32 v{E+2}, v{E+2}, v{E+4*k+2}')
    a(f'  v_cvt_pk_bf16_f32 v30, v{E}, v{E+2}')
    a('  v_lshlrev_b32 v28, 16, v30')
    a('  v_and_b32 v29, 0xffff0000, v30')
    a('  v_lshlrev_b32 v32, 16, v50')
    a('  v_and_b32 v33, 0xffff0000, v50')
    a('  v_add_f32 v28, v28, v32')
    a('  v_add_f32 v29, v29, v33')
    a('  v_cvt_pk_bf16_f32 v30, v28, v29')
    a('  v_lshlrev_b32 v28, 16, v30')
    a('  v_and_b32 v29, 0xffff0000, v30')
    a('  v_add_f32 v28, v28, v48')
    a('  v_add_f32 v29, v29, v49')
    a('  v_cvt_pk_bf16_f32 v30, v28, v29')
    a(f'  buffer_store_dword v30, v51, {OUT_}, 0 offen')
    a(f'  s_cmp_lg_u32 {sL}, 0')
    a('  s_cbranch_scc1 L_fin')
    a('  s_mov_b64 exec, 1')
    a(f'  s_mov_b32 {sT0}, {EP2}')
    a(f'  buffer_store_dword {vTagV}, off, {WS_}, 0')
    a(f'  buffer_store_dword {vTagV}, off, {WS_}, {sT0}')
    a('L_fin:')
    if ts:
        a('  s_waitcnt vmcnt(0)')
        a('  s_memrealtime s[64:65]')
        a('  s_waitcnt lgkmcnt(0)')
        for i in range(8):
            a(f'  v_mov_b32 v{24+i}, s{sTs+i}')
        a('  v_mov_b32 v32, s64')
        a('  v_mov_b32 v33, s65')
        a('  s_lshl_b32 s66, s2, 3')
        a(f'  s_add_u32 s66, s66, {sW}')
        a('  s_lshl_b32 s66, s66, 6')
        a(f'  s_add_u32 s66, s66, {TS_OFF}')
        a('  v_mov_b32 v1, s66')
        a('  s_mov_b64 exec, 1')
        a('  global_store_dwordx4 v1, v[24:27], s[28:29]')
        a('  global_store_dwordx4 v1, v[28:31], s[28:29] offset:16')
        a('  global_store_dwordx2 v1, v[32:33], s[28:29] offset:32')
    a('L_end:')
    a('  s_endpgm')
    body = '\n'.join(o)
    txt = HEADER + f'''; @launch grid=(256,1,1) block=(512,1,1) lds={LDS_BYTES}
.amdgcn_target "amdgcn-amd-amdhsa--gfx950"
.text
.globl {KNAME}
.p2align 8
.type {KNAME},@function
{body}
.section .rodata,"a"
.p2align 6
.amdhsa_kernel {KNAME}
  .amdhsa_next_free_vgpr 256
  .amdhsa_next_free_sgpr 102
  .amdhsa_accum_offset 256
  .amdhsa_group_segment_fixed_size 0
  .amdhsa_kernarg_size 104
  .amdhsa_user_sgpr_count 2
  .amdhsa_user_sgpr_kernarg_segment_ptr 1
  .amdhsa_system_sgpr_workgroup_id_x 1
  .amdhsa_float_denorm_mode_32 3
.end_amdhsa_kernel
'''
    return txt

if __name__ == '__main__':
    out = sys.argv[1]
    ts = 'ts' in sys.argv[2:]
    kw = {}
    for x in sys.argv[2:]:
        if x.startswith('ev='):
            ts = {n: i for i, n in enumerate(x[3:].split(','))}
        elif '=' in x:
            k, v = x.split('='); kw[k] = int(v)
    open(out, 'w').write(gen(ts=ts, exp=sys.argv[2:], **kw))
    print('lds', LDS_BYTES)
```

```python
import sys, struct, math

NAME = 'parallel_sum__gqa_block_cached__mixer_token_mlp__decode'
KNAME = NAME + '_kernel'

def f32(x):
    return '0x%08x' % struct.unpack('<I', struct.pack('<f', x))[0]

LOG2E = 1.4426950408889634
SCALE = 128 ** -0.5
K0 = math.sqrt(2.0 / math.pi)
GC0 = -2.0 * LOG2E * K0
GC1 = GC0 * 0.044715

HEADER = open('cdna_kernels/%s.s.ref' % NAME).read().split('; Override launch geometry')[0]

L_Q = 0
L_CNT = 512
L_FIN = 516
L_FLAG = 520
L_DONE = 524
L_ZERO = 528
L_TAG = 532
L_ML = 1024
L_Y = 1280
L_OP = 4096
L_POOL = 12288
L_WO = 14336
LDS_BYTES = (L_WO + 37 * 1008 + 64 + 255) // 256 * 256

QBOX = 4096
BLK = 2 << 20
B_O, B_Y, B_B, B_CTR = 0, 2304, 3072, 3840
GML = BLK + 256 * 4096
EP2 = GML + 32 * 256
WS_BYTES = EP2 + 256
TS_OFF = 1 << 20
INVALID = 0x40000000

def gen(ts=False, exp=(), D=3, NSTREAM=2, THR=1, NB1=3, BG=150, P=24, R=10, G=3, DK=64, SL1=4, SL2=2):
    o = []
    a = o.append
    NS = 256 - P
    DPPM = ' row_mask:0xf bank_mask:0xf'
    sW = 's3'
    sHKV, sB, sC, sL = 's30', 's31', 's32', 's2'
    sMask = 's33'
    sT0, sT1 = 's34', 's35'
    K_, V_, X_, WQ_, WO_, WS_, OUT_ = [f's[{i}:{i+3}]' for i in range(36, 64, 4)]
    def srd(base, lo, hi, nrec):
        a(f'  s_mov_b32 s{base}, {lo}')
        a(f'  s_and_b32 s{base+1}, {hi}, 0xffff')
        a(f'  s_mov_b32 s{base+2}, {nrec}')
        a(f'  s_mov_b32 s{base+3}, 0x20000')
    sOff = [f's{64+i}' for i in range(6)]
    sScale, sLog2e, sNLog2e, sGC1 = 's70', 's71', 's72', 's73'
    sSame = 's[74:75]'
    sTag, sIdx, sSpin, sB2 = 's76', 's77', 's78', 's79'
    sU = [f's{80+i}' for i in range(14)]
    sForce = 's80'
    sTs = 94
    vKoff, vVoff, vTick, vCnt = 'v1', 'v2', 'v3', 'v4'
    SEL = 5
    vM, vNegM, vLs = 'v13', 'v14', 'v15'
    O, S, AF, T, QF, RING = 16, 20, 24, 40, 48, 64
    vInc, vTagV, vL16, vCtl = 'v255', 'v254', 'v253', 'v252'
    assert D <= 5
    def vr(b, n=4): return f'v[{b}:{b+n-1}]'
    EV = {'start': 0, 'qready': 1, 'loopend': 2, 'hop1': 3}
    if isinstance(ts, dict): EV = ts
    def stamp(name):
        if ts and name in EV:
            i = EV[name]
            a(f'  s_memrealtime s[{sTs+2*i}:{sTs+2*i+1}]')
    def rnd(v):
        a(f'  v_cvt_pk_bf16_f32 {v}, {v}, {v}')
        a(f'  v_and_b32 {v}, 0xffff0000, {v}')
    def selectors(t0, t1, t2, t3):
        a(f'  v_and_b32 {t0}, 1, v0')
        a(f'  v_cmp_eq_u32 vcc, 1, {t0}')
        a(f'  v_mov_b32 {t0}, 0x0c0c0100')
        a(f'  v_mov_b32 {t1}, 0x01000c0c')
        a(f'  v_cndmask_b32 {t0}, {t0}, {t1}, vcc')
        a(f'  v_mov_b32 {t1}, 0x0c0c0302')
        a(f'  v_mov_b32 {t2}, 0x03020c0c')
        a(f'  v_cndmask_b32 {t1}, {t1}, {t2}, vcc')
        a(f'  v_bfe_u32 {t2}, v0, 1, 2')
        a(f'  v_mov_b32 {t3}, 0x0c0c0c0c')
        for d in range(4):
            a(f'  v_cmp_eq_u32 vcc, {d}, {t2}')
            a(f'  s_nop 1')
            a(f'  v_cndmask_b32 v{SEL+d}, {t3}, {t0}, vcc')
            a(f'  v_cndmask_b32 v{SEL+4+d}, {t3}, {t1}, vcc')
    def consts():
        a(f'  s_mov_b32 {sLog2e}, {f32(LOG2E)}')
        a(f'  s_mov_b32 {sNLog2e}, {f32(-LOG2E)}')
        a(f'  v_lshlrev_b32 {vL16}, 4, v0')
    def tagcheck(base, n, lbl_ok, lbl_retry, sl=1, shrink=False):
        tags = [f'v{base+2*k+1}' for k in range(2*n)]
        a(f'  v_max_u32 v35, {tags[0]}, {tags[1]}')
        a(f'  v_min_u32 v36, {tags[0]}, {tags[1]}')
        for k in range(2, 2*n, 2):
            a(f'  v_max3_u32 v35, v35, {tags[k]}, {tags[k+1]}')
            a(f'  v_min3_u32 v36, v36, {tags[k]}, {tags[k+1]}')
        a(f'  v_xor_b32 v35, v35, {vTagV}')
        a(f'  v_xor_b32 v36, v36, {vTagV}')
        a('  v_or_b32 v35, v35, v36')
        a('  v_cmp_ne_u32 vcc, 0, v35')
        a(f'  s_cbranch_vccz {lbl_ok}')
        if shrink:
            a('  s_mov_b64 exec, vcc')
        a(f'  s_sleep {sl}')
        a(f'  s_add_u32 {sSpin}, {sSpin}, 1')
        a(f'  s_cmp_lt_u32 {sSpin}, 0x8000')
        a(f'  s_cbranch_scc1 {lbl_retry}')

    a(f'{KNAME}:')
    a('  s_cmp_ge_u32 s2, 256')
    a('  s_cbranch_scc1 L_end')
    a('  s_load_dwordx16 s[4:19], s[0:1], 0')
    a('  s_load_dwordx8 s[20:27], s[0:1], 64')
    a('  s_load_dwordx2 s[28:29], s[0:1], 96')
    if ts:
        for i in range(8):
            a(f'  s_mov_b32 s{sTs+i}, 0')
    stamp('start')
    a('  v_lshrrev_b32 v1, 6, v0')
    a('  v_and_b32 v0, 63, v0')
    a(f'  v_readfirstlane_b32 {sW}, v1')
    a(f'  s_bfe_u32 {sHKV}, s2, 0x40003')
    a(f'  s_lshr_b32 {sB}, s2, 7')
    a(f'  s_and_b32 {sC}, s2, 7')
    a(f'  s_and_b32 {sIdx}, s2, 127')
    for k, (src, dst) in enumerate([(3, 14), (4, 13), (5, 19), (6, 17), (7, 12)]):
        a(f'  s_bfe_u32 {sT0}, s2, {0x10000 | src}')
        if k == 0:
            a(f'  s_lshl_b32 {sMask}, {sT0}, {dst}')
        else:
            a(f'  s_lshl_b32 {sT0}, {sT0}, {dst}')
            a(f'  s_or_b32 {sMask}, {sMask}, {sT0}')
    a('  v_and_b32 v24, 15, v0')
    a('  v_lshrrev_b32 v25, 4, v0')
    a('  v_lshlrev_b32 v27, 4, v24')
    a(f'  v_mov_b32 {vCtl}, {L_CNT}')
    a(f'  s_cmp_eq_u32 {sW}, 0')
    a('  s_cbranch_scc1 L_helper')

    a('  v_and_b32 v26, 7, v0')
    a('  v_lshlrev_b32 v26, 8, v26')
    a('  v_lshl_add_u32 v26, v25, 4, v26')
    a('  v_bfe_u32 v28, v0, 3, 1')
    a(f'  v_lshl_add_u32 {vKoff}, v28, 15, v26')
    a('  v_bfe_u32 v28, v0, 4, 1')
    a('  v_lshl_add_u32 v26, v28, 10, v27')
    a('  v_lshrrev_b32 v28, 5, v0')
    a(f'  v_lshl_add_u32 {vVoff}, v28, 15, v26')
    a(f'  s_lshr_b32 {sT0}, s2, 3')
    a(f'  s_lshl_b32 {sT0}, {sT0}, 23')
    a('  s_mov_b32 s38, 0x800000')
    a('  s_mov_b32 s42, 0x800000')
    a('  s_mov_b32 s39, 0x20000')
    a('  s_mov_b32 s43, 0x20000')
    a(f'  s_lshl_b32 {sForce}, {sC}, 20')
    a(f'  s_or_b32 {sForce}, {sForce}, {sMask}')
    a(f'  s_sub_u32 {sU[2]}, {sW}, 1')
    a(f'  s_lshl_b32 {sU[2]}, {sU[2]}, 11')
    for d in range(D):
        a(f'  s_and_b32 {sT1}, {sU[2]}, 0xffff8000')
        a(f'  s_add_u32 {sOff[d]}, {sU[2]}, {sT1}')
        a(f'  s_xor_b32 {sOff[d]}, {sOff[d]}, {sForce}')
        if d < D - 1:
            a(f'  s_add_u32 {sU[2]}, {sU[2]}, {7<<11}')
    a('  s_waitcnt lgkmcnt(0)')
    a(f'  s_add_u32 s36, s6, {sT0}')
    a('  s_addc_u32 s37, s7, 0')
    a('  s_and_b32 s37, s37, 0xffff')
    a(f'  s_add_u32 s40, s8, {sT0}')
    a('  s_addc_u32 s41, s9, 0')
    a('  s_and_b32 s41, s41, 0xffff')
    def loadK(slot):
        for n in range(4):
            a(f'  buffer_load_dwordx4 {vr(RING+slot*32+n*4)}, {vKoff}, {K_}, {sOff[slot]} offen offset:{n*64} nt')
    def loadV(slot):
        for n in range(4):
            a(f'  buffer_load_dwordx4 {vr(RING+slot*32+16+n*4)}, {vVoff}, {V_}, {sOff[slot]} offen offset:{n*256} nt')
    a('  s_barrier')
    loadK(0)
    srd(56, 's28', 's29', WS_BYTES)
    srd(52, 's12', 's13', 4096 * 1152)
    consts()
    a(f'  s_mov_b32 {sScale}, {f32(SCALE)}')
    a('  s_mov_b32 s74, 0x00ff00ff')
    a('  s_mov_b32 s75, 0xff00ff00')
    selectors('v26', 'v27', 'v28', 'v29')
    a(f'  s_cmp_le_u32 {sW}, {NSTREAM}')
    a(f'  s_cselect_b32 {sT0}, 2048, 0')
    a(f'  s_cselect_b32 {sT1}, 0, {INVALID}')
    a(f'  s_or_b32 {sForce}, {sForce}, {sT1}')
    a(f'  v_mov_b32 {vInc}, {sT0}')
    a(f'  s_cmp_le_u32 {sW}, {NSTREAM}')
    a(f'  s_cselect_b32 {sT0}, 0, {L_ZERO-L_CNT}')
    a(f'  v_add_u32 {vCnt}, {sT0}, {vCtl}')
    a(f'  v_mov_b32 {vM}, {f32(-1e30)}')
    a(f'  v_mov_b32 {vNegM}, {f32(1e30*LOG2E)}')
    a(f'  v_mov_b32 {vLs}, 0')
    for r in range(4):
        a(f'  v_mov_b32 v{O+r}, 0')
    a('  v_bfe_u32 v26, v0, 3, 1')
    a('  v_lshlrev_b32 v26, 8, v26')
    a('  v_lshl_add_u32 v26, v25, 4, v26')
    for d in range(D):
        if d > 0:
            a(f'  s_waitcnt vmcnt({THR})')
            loadK(d)
        a(f'  s_waitcnt vmcnt({THR})')
        loadV(d)
    stamp('issued')
    a('L_qwait:')
    a(f'  ds_read_b32 v27, {vCtl} offset:{L_FLAG-L_CNT}')
    a('  s_waitcnt lgkmcnt(0)')
    a(f'  v_readfirstlane_b32 {sT0}, v27')
    a(f'  s_cmp_eq_u32 {sT0}, 1')
    a('  s_cbranch_scc1 L_qgot')
    a('  s_sleep 2')
    a('  s_branch L_qwait')
    a('L_qgot:')
    for j in range(4):
        a(f'  ds_read_b128 {vr(QF+4*j)}, v26 offset:{L_Q+64*j}')
    a(f'  ds_read_b32 {vTagV}, {vCtl} offset:{L_TAG-L_CNT}')
    a('  s_waitcnt lgkmcnt(0)')
    stamp('qready')

    rare = []
    NW = 8 * D - 4
    def tile(slot):
        kb = RING + slot * 32
        vb = kb + 16
        t = [f'v{T+i}' for i in range(4)]
        mx, tmp = f'v{T+4}', f'v{T+5}'
        pb = [f'v{T+6}', f'v{T+7}']
        a(f'  s_cmp_ge_u32 {sOff[slot]}, 0x800000')
        a('  s_cbranch_scc1 L_done')
        a(f'  s_waitcnt vmcnt({NW})')
        a('  s_mov_b64 exec, 1')
        a(f'  ds_add_rtn_u32 {vTick}, {vCnt}, {vInc}')
        a('  s_mov_b64 exec, -1')
        for j in range(4):
            c = '0' if j == 0 else vr(S)
            a(f'  v_mfma_f32_16x16x32_bf16 {vr(S)}, {vr(kb+4*j)}, {vr(QF+4*j)}, {c}')
        a('  s_waitcnt lgkmcnt(0)')
        a(f'  v_readfirstlane_b32 {sT0}, {vTick}')
        a(f'  s_cmp_ge_u32 {sT0}, {NS<<11}')
        a(f'  s_cbranch_scc1 L_pool{slot}')
        a(f'  s_and_b32 {sT1}, {sT0}, 0xffff8000')
        a(f'  s_add_u32 {sT0}, {sT0}, {sT1}')
        a(f'  s_xor_b32 {sOff[slot]}, {sT0}, {sForce}')
        a(f'L_pback{slot}:')
        loadK(slot)
        a(f'  v_cvt_pk_bf16_f32 {t[0]}, v{S}, v{S+1}')
        a(f'  v_cvt_pk_bf16_f32 {t[2]}, v{S+2}, v{S+3}')
        def unpack():
            a(f'  v_and_b32 {t[1]}, 0xffff0000, {t[0]}')
            a(f'  v_lshlrev_b32 {t[0]}, 16, {t[0]}')
            a(f'  v_and_b32 {t[3]}, 0xffff0000, {t[2]}')
            a(f'  v_lshlrev_b32 {t[2]}, 16, {t[2]}')
        unpack()
        for i in range(4):
            a(f'  v_mul_f32 {t[i]}, {sScale}, {t[i]}')
        a(f'  v_cvt_pk_bf16_f32 {t[0]}, {t[0]}, {t[1]}')
        a(f'  v_cvt_pk_bf16_f32 {t[2]}, {t[2]}, {t[3]}')
        unpack()
        a(f'  v_max3_f32 {mx}, {t[0]}, {t[1]}, {t[2]}')
        a(f'  v_max_f32 {mx}, {mx}, {t[3]}')
        a(f'  v_cmp_gt_f32 vcc, {mx}, {vM}')
        a(f'  s_cbranch_vccnz L_rare{slot}')
        a(f'L_back{slot}:')
        for i in range(4):
            a(f'  v_fma_f32 {t[i]}, {t[i]}, {sLog2e}, {vNegM}')
        for i in range(4):
            a(f'  v_exp_f32 {t[i]}, {t[i]}')
        a(f'  v_cvt_pk_bf16_f32 {pb[0]}, {t[0]}, {t[1]}')
        a(f'  v_add_f32 {tmp}, {t[0]}, {t[1]}')
        a(f'  v_cvt_pk_bf16_f32 {pb[1]}, {t[2]}, {t[3]}')
        a(f'  v_add_f32 {mx}, {t[2]}, {t[3]}')
        for r in range(4):
            for d in range(4):
                a(f'  v_perm_b32 v{AF+4*r+d}, {pb[r//2]}, {pb[r//2]}, v{SEL+(r&1)*4+d}')
        a(f'  v_add_f32 {tmp}, {tmp}, {mx}')
        a(f'  v_add_f32 {vLs}, {vLs}, {tmp}')
        a(f'  s_waitcnt vmcnt({NW})')
        for r in range(4):
            a(f'  v_mfma_f32_16x16x32_bf16 {vr(O)}, {vr(AF+4*r)}, {vr(vb+4*r)}, {vr(O)}')
        loadV(slot)
        r_ = rare.append
        r_(f'L_rare{slot}:')
        for p in ['v_permlane32_swap_b32', 'v_permlane16_swap_b32']:
            r_(f'  v_mov_b32 {tmp}, {mx}')
            r_('  s_nop 1')
            r_(f'  {p} {tmp}, {mx}')
            r_(f'  v_max_f32 {mx}, {mx}, {tmp}')
        r_(f'  v_max_f32 {mx}, {mx}, {vM}')
        r_(f'  v_sub_f32 {tmp}, {vM}, {mx}')
        r_(f'  v_mul_f32 {tmp}, {sLog2e}, {tmp}')
        r_(f'  v_exp_f32 {tmp}, {tmp}')
        r_(f'  v_mov_b32 {vM}, {mx}')
        r_(f'  v_mul_f32 {vNegM}, {sNLog2e}, {mx}')
        r_(f'  v_mul_f32 {vLs}, {vLs}, {tmp}')
        r_(f'  v_mov_b32_dpp {mx}, {tmp} row_ror:8{DPPM}')
        r_(f'  v_cndmask_b32 {mx}, {mx}, {tmp}, {sSame}')
        for r in range(4):
            r_(f'  v_mul_f32 v{O+r}, v{O+r}, {mx}')
        r_(f'  s_branch L_back{slot}')
        r_(f'L_pool{slot}:')
        r_(f'  s_sub_u32 {sT0}, {sT0}, {NS<<11}')
        r_(f'  s_lshr_b32 {sT0}, {sT0}, 9')
        r_(f'  v_mov_b32 {mx}, {sT0}')
        r_(f'L_pspin{slot}:')
        r_(f'  ds_read_b32 {vTick}, {mx} offset:{L_POOL}')
        r_('  s_waitcnt lgkmcnt(0)')
        r_(f'  v_readfirstlane_b32 {sT1}, {vTick}')
        r_(f'  s_mov_b32 {sOff[slot]}, {sT1}')
        r_(f'  s_cmp_lg_u32 {sT1}, -1')
        r_(f'  s_cbranch_scc1 L_pback{slot}')
        r_('  s_sleep 1')
        r_(f'  s_branch L_pspin{slot}')
    a('.p2align 6')
    a('L_loop:')
    for d in range(D):
        tile(d)
    a('  s_branch L_loop')
    o += rare

    a('.p2align 6')
    a('L_helper:')
    a('  s_setprio 3')
    XA, XB, XF, WQ, GQ = 64, 74, 84, 104, 176
    vXC = 'v73'
    a('  v_bfe_u32 v26, v0, 3, 1')
    a('  v_mul_u32_u24 v26, 1152, v26')
    a('  v_and_b32 v28, 7, v0')
    a('  v_lshl_add_u32 v28, v25, 3, v28')
    a('  v_mad_u32_u24 v28, v28, 36, v26')
    a('  v_mad_u32_u24 v29, v25, 36, v26')
    a('  v_mul_u32_u24 v30, 0x24000, v25')
    a('  v_add_u32 v30, v30, v27')
    a('  v_lshlrev_b32 v31, 1, v0')
    a(f'  v_mov_b32 v32, {(7*D)<<11}')
    a('  v_mov_b32 v33, -1')
    a('  v_mov_b32 v34, 0')
    a('  v_mov_b32 v35, 0')
    a(f'  ds_write_b128 {vCtl}, v[32:35]')
    a(f'  ds_write_b32 {vCtl}, v34 offset:{L_ZERO-L_CNT}')
    sRG, sCG, sI16 = sU[0], sU[1], sU[2]
    a(f'  s_lshl_b32 {sI16}, {sB}, 3')
    a(f'  s_or_b32 {sI16}, {sI16}, {sC}')
    a(f'  s_lshr_b32 {sRG}, {sI16}, 1')
    a(f'  s_and_b32 {sCG}, {sI16}, 1')
    a(f'  s_mul_i32 {sT1}, {sRG}, 144')
    a(f'  s_mul_i32 {sT0}, {sRG}, {72*8192}')
    a(f'  s_lshl_b32 {sU[3]}, {sHKV}, 9')
    a(f'  s_add_u32 {sT0}, {sT0}, {sU[3]}')
    a(f'  s_lshl_b32 {sU[3]}, {sCG}, 8')
    a(f'  s_add_u32 {sT0}, {sT0}, {sU[3]}')
    a('  s_mov_b32 s46, 2304')
    a('  s_mov_b32 s47, 0x20000')
    a(f'  s_mov_b32 s50, {576*8192}')
    a('  s_mov_b32 s51, 0x20000')
    a(f'  s_mov_b32 s58, {WS_BYTES}')
    a('  s_mov_b32 s59, 0x20000')
    a('  s_waitcnt lgkmcnt(0)')
    a('  s_mov_b32 s44, s4')
    a('  s_and_b32 s45, s5, 0xffff')
    a('  s_mov_b32 s48, s10')
    a('  s_and_b32 s49, s11, 0xffff')
    a('  s_mov_b32 s56, s28')
    a('  s_and_b32 s57, s29, 0xffff')
    a(f'  buffer_load_dwordx4 {vr(XA)}, v28, {X_}, 0 offen')
    a(f'  buffer_load_dwordx4 {vr(XA+4)}, v28, {X_}, 0 offen offset:16')
    a(f'  buffer_load_dword v{XA+8}, v28, {X_}, 0 offen offset:32')
    a(f'  buffer_load_dwordx4 {vr(XB)}, v29, {X_}, {sT1} offen')
    a(f'  buffer_load_dwordx4 {vr(XB+4)}, v29, {X_}, {sT1} offen offset:16')
    a(f'  buffer_load_dword v{XB+8}, v29, {X_}, {sT1} offen offset:32')
    for n in range(18):
        a(f'  buffer_load_dwordx4 {vr(WQ+4*n)}, v30, {WQ_}, {sT0} offen nt')
        if n < 17:
            a(f'  s_add_u32 {sT0}, {sT0}, 8192')
    a('  s_barrier')
    a(f'  s_load_dword {sTag}, s[28:29], 0')
    a(f'  s_add_u32 {sU[4]}, s28, {EP2}')
    a(f'  s_addc_u32 {sU[5]}, s29, 0')
    a(f'  s_load_dword {sSpin}, s[84:85], 0')
    a(f'  s_load_dword {sB2}, s[22:23], 0')
    sFG, sOS = sU[6], sU[7]
    a(f'  s_mul_i32 {sFG}, {sIdx}, 57')
    a(f'  s_lshr_b32 {sFG}, {sFG}, 9')
    a(f'  s_mul_i32 {sT0}, {sFG}, 9')
    a(f'  s_sub_u32 {sOS}, {sIdx}, {sT0}')
    a(f'  s_min_u32 {sFG}, {sFG}, 11')
    a(f'  s_mul_i32 {sT0}, {sB}, 1152')
    a(f'  s_lshl_b32 {sT1}, {sOS}, 7')
    a(f'  s_add_u32 {sT0}, {sT0}, {sT1}')
    a(f'  buffer_load_ushort {vXC}, v31, {X_}, {sT0} offen')
    stamp('issued')
    consts()
    srd(52, 's12', 's13', 4096 * 1152)
    a(f'  s_mov_b32 {sGC1}, {f32(GC1)}')
    selectors('v26', 'v27', 'v28', 'v29')
    a('  v_mov_b32 v32, -1')
    a('  v_mov_b32 v34, -1')
    a('  v_mov_b32 v35, -1')
    a(f'  ds_write_b128 {vL16}, v[32:35] offset:{L_POOL}')
    a(f'  ds_write_b128 {vL16}, v[32:35] offset:{L_POOL+1024}')
    def half_sum(v, t):
        for m in ['quad_perm:[1,0,3,2]', 'quad_perm:[2,3,0,1]', 'row_half_mirror']:
            a('  s_nop 1')
            a(f'  v_add_f32_dpp {v}, {v}, {v} {m}{DPPM}')
        for p in ['v_permlane16_swap_b32', 'v_permlane32_swap_b32']:
            a(f'  v_mov_b32 {t}, {v}')
            a('  s_nop 1')
            a(f'  {p} {t}, {v}')
            a(f'  v_add_f32 {v}, {v}, {t}')
    def ln_stats(mu, rd, t0, t1, t2):
        a(f'  v_add_f32 {t0}, v{XF}, v{XF+1}')
        a(f'  v_add_f32 {t1}, v{XF+2}, v{XF+3}')
        for k in range(4, 18, 2):
            a(f'  v_add_f32 {t0}, {t0}, v{XF+k}')
            a(f'  v_add_f32 {t1}, {t1}, v{XF+k+1}')
        a(f'  v_add_f32 {t0}, {t0}, {t1}')
        half_sum(t0, t1)
        a(f'  v_mul_f32 {mu}, {f32(1.0/576)}, {t0}')
        for k in range(18):
            tt = t1 if k & 1 else t2
            a(f'  v_sub_f32 {tt}, v{XF+k}, {mu}')
            if k == 0:
                a(f'  v_mul_f32 {t0}, {tt}, {tt}')
            else:
                a(f'  v_fmac_f32 {t0}, {tt}, {tt}')
        half_sum(t0, t1)
        a(f'  v_mul_f32 {t0}, {f32(1.0/576)}, {t0}')
        rnd(t0)
        a(f'  v_add_f32 {t0}, {f32(1e-5)}, {t0}')
        rnd(t0)
        a(f'  v_sqrt_f32 {t0}, {t0}')
        a('  s_nop 0')
        rnd(t0)
        a(f'  v_rcp_f32 {rd}, {t0}')
        rnd(mu)
    def norm_pair(lo, hi, dst, mu, rd):
        a(f'  v_sub_f32 {lo}, {lo}, {mu}')
        a(f'  v_sub_f32 {hi}, {hi}, {mu}')
        a(f'  v_cvt_pk_bf16_f32 {lo}, {lo}, {hi}')
        a(f'  v_and_b32 {hi}, 0xffff0000, {lo}')
        a(f'  v_lshlrev_b32 {lo}, 16, {lo}')
        a(f'  v_mul_f32 {lo}, {lo}, {rd}')
        a(f'  v_mul_f32 {hi}, {hi}, {rd}')
        a(f'  v_cvt_pk_bf16_f32 {dst}, {lo}, {hi}')
    a('  s_waitcnt vmcnt(22)')
    stamp('xarr')
    for k in range(9):
        a(f'  v_lshlrev_b32 v{XF+2*k}, 16, v{XA+k}')
        a(f'  v_and_b32 v{XF+2*k+1}, 0xffff0000, v{XA+k}')
    vMu, vRd = 'v32', 'v33'
    a('  s_waitcnt lgkmcnt(0)')
    ln_stats(vMu, vRd, 'v34', 'v35', 'v36')
    a('  s_waitcnt vmcnt(19)')
    a(f'  s_mul_i32 {sTag}, {sTag}, 1664525')
    a(f'  s_add_u32 {sTag}, {sTag}, 1013904223')
    a(f'  s_mul_i32 {sSpin}, {sSpin}, 0x9e3779b4')
    a(f'  s_add_u32 {sTag}, {sTag}, {sSpin}')
    a(f'  v_mov_b32 {vTagV}, {sTag}')
    for k in range(9):
        r = XB + k
        a(f'  v_lshlrev_b32 v34, 16, v{r}')
        a(f'  v_and_b32 v35, 0xffff0000, v{r}')
        norm_pair('v34', 'v35', f'v{r}', vMu, vRd)
        for hh in range(2):
            af = 24 + hh * 4
            for d in range(4):
                a(f'  v_perm_b32 v{af+d}, v{r}, v{r}, v{SEL+hh*4+d}')
        for hh in range(2):
            n = 2 * k + hh
            af = 24 + hh * 4
            if hh == 0:
                a(f'  s_waitcnt vmcnt({17 - 2*k})')
                a('  s_nop 0')
            c = '0' if n == 0 else vr(16)
            a(f'  v_mfma_f32_16x16x32_bf16 {vr(16)}, {vr(af)}, {vr(WQ+4*n)}, {c}')
    a('  v_and_b32 v34, 15, v0')
    a('  v_lshlrev_b32 v34, 6, v34')
    a('  v_bfe_u32 v35, v0, 4, 1')
    a('  v_lshl_add_u32 v34, v35, 5, v34')
    a('  v_lshrrev_b32 v35, 5, v0')
    a('  v_lshl_add_u32 v34, v35, 10, v34')
    a(f'  s_lshl_b32 {sT0}, {sHKV}, 4')
    a(f'  s_add_u32 {sT1}, {sT0}, {sI16}')
    a(f'  s_lshl_b32 {sT1}, {sT1}, 11')
    a(f'  s_add_u32 {sT1}, {sT1}, {QBOX}')
    a(f'  v_mov_b32 v21, {sTag}')
    a(f'  v_mov_b32 v23, {sTag}')
    a('  v_mov_b32 v22, v19')
    a('  v_mov_b32 v20, v18')
    a('  v_mov_b32 v18, v17')
    a(f'  v_mov_b32 v17, {sTag}')
    a(f'  v_mov_b32 v19, {sTag}')
    a(f'  buffer_store_dwordx4 v[16:19], v34, {WS_}, {sT1} offen sc1')
    a(f'  buffer_store_dwordx4 v[20:23], v34, {WS_}, {sT1} offen offset:16 sc1')
    stamp('qpub')
    sMu1, sRd1 = sU[8], sU[9]
    a(f'  s_lshl_b32 {sU[3]}, {sB}, 3')
    a(f'  v_readlane_b32 {sMu1}, {vMu}, {sU[3]}')
    a(f'  v_readlane_b32 {sRd1}, {vRd}, {sU[3]}')
    for k in range(9):
        norm_pair(f'v{XF+2*k}', f'v{XF+2*k+1}', 'v34', vMu, vRd)
        a(f'  v_lshlrev_b32 v{XF+2*k}, 16, v34')
        a(f'  v_and_b32 v{XF+2*k+1}, 0xffff0000, v34')
    ln_stats(vMu, vRd, 'v34', 'v35', 'v36')
    vH = 'v37'
    a('  s_waitcnt vmcnt(2)')
    a(f'  v_lshlrev_b32 {vH}, 16, {vXC}')
    a(f'  v_subrev_f32 {vH}, {sMu1}, {vH}')
    rnd(vH)
    a(f'  v_mul_f32 {vH}, {sRd1}, {vH}')
    rnd(vH)
    a(f'  v_readlane_b32 {sMu1}, {vMu}, {sU[3]}')
    a(f'  v_readlane_b32 {sRd1}, {vRd}, {sU[3]}')
    a('  s_nop 1')
    a(f'  v_subrev_f32 {vH}, {sMu1}, {vH}')
    rnd(vH)
    a(f'  v_mul_f32 {vH}, {sRd1}, {vH}')
    rnd(vH)
    vBacc, vGC0 = 'v39', 'v40'
    a(f'  v_mov_b32 {vBacc}, 0')
    a(f'  v_mov_b32 {vGC0}, {f32(GC0)}')
    sBo, sCnt, sLim = 's36', 's39', 's40'
    a(f'  s_mul_i32 {sBo}, {sFG}, 768')
    a(f'  s_mov_b32 {sCnt}, 0')
    a(f'  s_mov_b32 {sLim}, {NB1}')
    a('L_bloop:')
    a(f'  s_load_dwordx4 s[80:83], s[16:17], {sBo}')
    a(f'  s_load_dwordx4 s[84:87], s[18:19], {sBo}')
    a(f'  s_load_dwordx4 s[88:91], s[20:21], {sBo}')
    a('  s_waitcnt lgkmcnt(0)')
    for k in range(4):
        x0, x1, y0, y1, pk = 'v42', 'v43', 'v44', 'v45', 'v46'
        a(f'  s_lshl_b32 s64, s{80+k}, 16')
        a(f'  s_and_b32 s65, s{80+k}, 0xffff0000')
        a(f'  s_lshl_b32 s66, s{84+k}, 16')
        a(f'  s_and_b32 s67, s{84+k}, 0xffff0000')
        a(f'  s_lshl_b32 s68, s{88+k}, 16')
        a(f'  s_and_b32 s69, s{88+k}, 0xffff0000')
        a(f'  v_mul_f32 {x0}, s64, {vH}')
        a(f'  v_mul_f32 {x1}, s65, {vH}')
        a(f'  v_cvt_pk_bf16_f32 {pk}, {x0}, {x1}')
        a(f'  v_lshlrev_b32 {x0}, 16, {pk}')
        a(f'  v_and_b32 {x1}, 0xffff0000, {pk}')
        a(f'  v_add_f32 {x0}, s66, {x0}')
        a(f'  v_add_f32 {x1}, s67, {x1}')
        a(f'  v_cvt_pk_bf16_f32 {pk}, {x0}, {x1}')
        a(f'  v_lshlrev_b32 {x0}, 16, {pk}')
        a(f'  v_and_b32 {x1}, 0xffff0000, {pk}')
        a(f'  v_mul_f32 {y0}, {x0}, {x0}')
        a(f'  v_mul_f32 {y1}, {x1}, {x1}')
        a(f'  v_fma_f32 {y0}, {y0}, {sGC1}, {vGC0}')
        a(f'  v_fma_f32 {y1}, {y1}, {sGC1}, {vGC0}')
        a(f'  v_mul_f32 {y0}, {y0}, {x0}')
        a(f'  v_mul_f32 {y1}, {y1}, {x1}')
        a(f'  v_exp_f32 {y0}, {y0}')
        a(f'  v_exp_f32 {y1}, {y1}')
        a(f'  v_add_f32 {y0}, 1.0, {y0}')
        a(f'  v_add_f32 {y1}, 1.0, {y1}')
        a(f'  v_rcp_f32 {y0}, {y0}')
        a(f'  v_rcp_f32 {y1}, {y1}')
        a(f'  v_mul_f32 {y0}, {y0}, {x0}')
        a(f'  v_mul_f32 {y1}, {y1}, {x1}')
        a(f'  v_cvt_pk_bf16_f32 {pk}, {y0}, {y1}')
        a(f'  v_lshlrev_b32 {x0}, 16, {pk}')
        a(f'  v_and_b32 {x1}, 0xffff0000, {pk}')
        a(f'  v_fmac_f32 {vBacc}, s68, {x0}')
        a(f'  v_fmac_f32 {vBacc}, s69, {x1}')
    a(f'  s_add_u32 {sBo}, {sBo}, 16')
    a(f'  s_add_u32 {sCnt}, {sCnt}, 1')
    a(f'  s_cmp_lt_u32 {sCnt}, {sLim}')
    a('  s_cbranch_scc1 L_bloop')
    a(f'  s_cmp_eq_u32 {sLim}, 48')
    a('  s_cbranch_scc1 L_bdone')
    a('  v_and_b32 v34, 31, v0')
    a('  v_lshlrev_b32 v34, 5, v34')
    a('  v_lshrrev_b32 v35, 5, v0')
    a('  v_lshl_add_u32 v34, v35, 11, v34')
    a(f'  s_lshl_b32 {sT0}, {sHKV}, 15')
    a(f'  s_lshl_b32 {sT1}, {sB}, 10')
    a(f'  s_add_u32 {sT0}, {sT0}, {sT1}')
    a(f'  s_add_u32 {sT0}, {sT0}, {QBOX}')
    a(f'  s_mov_b32 {sSpin}, 0')
    stamp('q0')
    a('L_pollq:')
    a(f'  s_mov_b32 {sT1}, {sT0}')
    for k in range(8):
        a(f'  buffer_load_dwordx4 {vr(GQ+8*k)}, v34, {WS_}, {sT1} offen sc1')
        a(f'  buffer_load_dwordx4 {vr(GQ+8*k+4)}, v34, {WS_}, {sT1} offen offset:16 sc1')
        if k < 7:
            a(f'  s_add_u32 {sT1}, {sT1}, 4096')
    a('  s_waitcnt vmcnt(0)')
    tagcheck(GQ, 16, 'L_gotq', 'L_pollq', 16)
    a('L_gotq:')
    for k in range(1, 8):
        for r in range(4):
            a(f'  v_add_f32 v{GQ+2*r}, v{GQ+2*r}, v{GQ+8*k+2*r}')
    a(f'  v_cvt_pk_bf16_f32 v16, v{GQ}, v{GQ+2}')
    a(f'  v_cvt_pk_bf16_f32 v17, v{GQ+4}, v{GQ+6}')
    a('  v_lshlrev_b32 v34, 3, v0')
    a(f'  ds_write_b64 v34, v[16:17] offset:{L_Q}')
    a('  v_mov_b32 v35, 1')
    a(f'  ds_write_b32 {vCtl}, {vTagV} offset:{L_TAG-L_CNT}')
    a('  s_waitcnt lgkmcnt(0)')
    a(f'  ds_write_b32 {vCtl}, v35 offset:{L_FLAG-L_CNT}')
    stamp('qready')
    a('  s_setprio 0')
    a(f'  s_mov_b32 {sLim}, 48')
    a('  s_branch L_bloop')
    a('L_bdone:')
    a(f'  s_lshl_b32 {sT1}, {sL}, 12')
    a(f'  s_add_u32 {sT1}, {sT1}, {BLK}')
    a(f'  s_cmp_ge_u32 {sIdx}, 108')
    a('  s_cbranch_scc1 L_nobst')
    a(f'  v_mov_b32 v42, {vBacc}')
    a(f'  v_mov_b32 v43, {vTagV}')
    a('  v_lshlrev_b32 v34, 3, v0')
    a(f'  buffer_store_dwordx2 v[42:43], v34, {WS_}, {sT1} offen offset:{B_B} sc1')
    a('L_nobst:')
    a(f'  s_cmp_lg_u32 {sC}, 0')
    a('  s_cbranch_scc1 L_noctr')
    a('  v_mov_b32 v44, 0')
    a(f'  v_mov_b32 v45, {vTagV}')
    a('  s_mov_b64 exec, 1')
    a(f'  buffer_store_dwordx2 v[44:45], off, {WS_}, {sT1} offset:{B_CTR} sc1')
    a('  s_mov_b64 exec, -1')
    a('L_noctr:')
    stamp('bdone')
    def wait_cnt(lbl, val, sl):
        a(f'{lbl}:')
        a(f'  ds_read_b32 v35, {vCtl}')
        a(f'  s_sleep {sl}')
        a('  s_waitcnt lgkmcnt(0)')
        a(f'  v_readfirstlane_b32 {sT0}, v35')
        a(f'  s_cmp_lt_u32 {sT0}, {val}')
        a(f'  s_cbranch_scc1 {lbl}')
    a(f'  s_lshl_b32 {sT0}, {sC}, 1')
    a(f'  s_add_u32 {sT0}, {sT0}, {sB}')
    a(f'  s_cmp_lg_u32 {sT0}, {sHKV}')
    a('  s_cbranch_scc1 L_tickets')
    wait_cnt('L_bgwait', BG << 11, 32)
    a(f'  s_mul_i32 {sT0}, {sC}, 72')
    a(f'  v_lshl_add_u32 v34, v0, 1, {sT0}')
    a('  v_lshrrev_b32 v42, 6, v34')
    a('  v_lshlrev_b32 v42, 12, v42')
    a('  v_and_b32 v43, 63, v34')
    a('  v_lshl_add_u32 v42, v43, 3, v42')
    a('  v_lshlrev_b32 v51, 1, v34')
    a(f'  s_mul_i32 {sT1}, {sB}, 1152')
    a(f'  v_add_u32 v51, {sT1}, v51')
    a(f'  s_lshl_b32 {sT0}, {sB}, 19')
    a(f'  s_add_u32 {sT0}, {sT0}, {BLK}')
    a('  s_mov_b32 exec_hi, 0xf')
    a(f'  buffer_load_dword v50, v51, {X_}, 0 offen')
    a(f'  s_mov_b32 {sSpin}, 0')
    a('L_pollb:')
    a(f'  s_mov_b32 {sT1}, {sT0}')
    for k in range(12):
        a(f'  buffer_load_dwordx4 {vr(GQ+4*k)}, v42, {WS_}, {sT1} offen offset:{B_B} sc1')
        if k < 11:
            a(f'  s_add_u32 {sT1}, {sT1}, {9*4096}')
    a('  s_waitcnt vmcnt(0)')
    tagcheck(GQ, 12, 'L_gotb', 'L_pollb', 64)
    a('L_gotb:')
    for k in range(1, 12):
        a(f'  v_add_f32 v{GQ}, v{GQ}, v{GQ+4*k}')
        a(f'  v_add_f32 v{GQ+2}, v{GQ+2}, v{GQ+4*k+2}')
    a(f'  s_lshl_b32 {sB2}, {sB2}, 16')
    a(f'  v_cvt_pk_bf16_f32 v34, v{GQ}, v{GQ+2}')
    a('  v_lshlrev_b32 v48, 16, v34')
    a('  v_and_b32 v49, 0xffff0000, v34')
    a(f'  v_add_f32 v48, {sB2}, v48')
    a(f'  v_add_f32 v49, {sB2}, v49')
    a('  v_cvt_pk_bf16_f32 v34, v48, v49')
    a('  v_lshlrev_b32 v48, 16, v34')
    a('  v_and_b32 v49, 0xffff0000, v34')
    a('  s_mov_b64 exec, -1')
    a('L_tickets:')
    sF, sPend, sEnd = 's36', 's37', 's38'
    sN = ['s80', 's81', 's82', 's83']
    vK = ['v52', 'v54', 'v56', 'v58']
    vKh = ['v53', 'v55', 'v57', 'v59']
    a(f'  s_and_b32 {sT0}, s2, 0xf8')
    a(f'  s_lshl_b32 s40, {sT0}, 12')
    a(f'  s_add_u32 s40, s40, {BLK}')
    a(f'  s_mov_b32 {sF}, 0')
    a(f'  s_mov_b32 {sPend}, 0')
    a(f'  s_mov_b32 {sEnd}, 0')
    a(f'  s_mov_b32 {sSpin}, 0')
    for k in range(4):
        a(f'  s_mov_b32 {sN[k]}, 0')
        a(f'  v_mov_b32 {vK[k]}, 0')
        a(f'  v_mov_b32 {vKh[k]}, 0')
    a('  v_mov_b32 v45, 0')
    a('  s_waitcnt vmcnt(0)')
    wait_cnt('L_tkwait', (NS - R - 2) << 11, 8)
    a('  s_setprio 3')
    a('L_tkloop:')
    for k in range(4):
        a('  s_waitcnt vmcnt(3)')
        a(f'  ds_read_b32 v35, {vCtl}')
        a(f'  v_readfirstlane_b32 {sT0}, {vK[k]}')
        a(f'  v_readfirstlane_b32 {sT1}, {vKh[k]}')
        a(f'  s_sub_u32 {sPend}, {sPend}, {sN[k]}')
        a(f'  s_cmp_eq_u32 {sT1}, {sTag}')
        a(f'  s_cselect_b32 {sN[k]}, {sN[k]}, 0')
        a(f'  s_cmp_eq_u32 {sN[k]}, 0')
        a(f'  s_cbranch_scc1 L_tkn{k}')
        a(f'  s_cmp_lt_u32 {sT0}, {8*P - DK}')
        a(f'  s_cbranch_scc1 L_tkf{k}')
        a(f'  ds_write_b32 {vCtl}, v45 offset:{L_FIN-L_CNT}')
        a(f'L_tkf{k}:')
        a(f'  s_add_u32 {sT1}, {sT0}, {sN[k]}')
        a(f'  s_min_u32 {sT1}, {sT1}, {8*P}')
        a(f'  s_min_u32 s41, {sT0}, {8*P}')
        a(f'  s_sub_u32 s41, {sT1}, s41')
        a(f'  s_cmp_ge_u32 {sT1}, {8*P}')
        a(f'  s_cselect_b32 {sEnd}, 1, {sEnd}')
        a('  s_cmp_eq_u32 s41, 0')
        a(f'  s_cbranch_scc1 L_tkn{k}')
        a(f'  v_add_u32 v42, {sT0}, v0')
        a('  v_lshrrev_b32 v43, 3, v42')
        a(f'  v_add_u32 v43, {NS}, v43')
        a('  v_lshlrev_b32 v43, 11, v43')
        a('  v_and_b32 v44, 0xffff8000, v43')
        a('  v_add_u32 v43, v43, v44')
        a(f'  v_xor_b32 v43, {sMask}, v43')
        a('  v_and_b32 v42, 7, v42')
        a('  v_lshl_add_u32 v43, v42, 20, v43')
        a(f'  v_add_u32 v44, {sF}, v0')
        a('  v_lshlrev_b32 v44, 2, v44')
        a('  s_bfm_b64 exec, s41, 0')
        a(f'  ds_write_b32 v44, v43 offset:{L_POOL}')
        a('  s_mov_b64 exec, -1')
        a(f'  s_add_u32 {sF}, {sF}, s41')
        a(f'L_tkn{k}:')
        a(f'  s_cmp_eq_u32 {sEnd}, 1')
        a(f'  s_cselect_b32 {sT1}, {sPend}, 1')
        a(f'  s_cmp_eq_u32 {sT1}, 0')
        a('  s_cbranch_scc1 L_tkend')
        a('  s_waitcnt lgkmcnt(0)')
        a(f'  v_readfirstlane_b32 {sT0}, v35')
        a(f'  s_lshr_b32 {sT0}, {sT0}, 11')
        a(f'  s_sub_u32 {sT0}, {sT0}, {NS - R}')
        a(f'  s_sub_u32 {sT0}, {sT0}, {sF}')
        a(f'  s_sub_u32 {sT0}, {sT0}, {sPend}')
        a(f'  s_max_i32 {sT0}, {sT0}, 0')
        a(f'  s_min_i32 {sT0}, {sT0}, {G}')
        a(f'  s_cmp_eq_u32 {sEnd}, 1')
        a(f'  s_cselect_b32 {sN[k]}, 0, {sT0}')
        a(f'  s_add_u32 {sPend}, {sPend}, {sN[k]}')
        a(f'  v_mov_b32 {vK[k]}, {sN[k]}')
        a(f'  v_mov_b32 {vKh[k]}, 0')
        a(f'  s_cmp_eq_u32 {sN[k]}, 0')
        a(f'  s_cselect_b32 {sT1}, {INVALID}, s40')
        a('  s_mov_b64 exec, 1')
        a(f'  buffer_atomic_add_x2 v[{52+2*k}:{53+2*k}], off, {WS_}, {sT1} offset:{B_CTR} sc0')
        a('  s_mov_b64 exec, -1')
        a('  s_sleep 2')
    a(f'  s_add_u32 {sSpin}, {sSpin}, 1')
    a(f'  s_cmp_lt_u32 {sSpin}, 0x8000')
    a('  s_cbranch_scc1 L_tkloop')
    a('L_tkend:')
    a(f'  ds_write_b32 {vCtl}, v45 offset:{L_FIN-L_CNT}')
    a(f'  v_add_u32 v44, {sF}, v0')
    a('  v_lshlrev_b32 v44, 2, v44')
    a(f'  v_mov_b32 v43, {INVALID}')
    a(f'  ds_write_b32 v44, v43 offset:{L_POOL}')
    stamp('poolend')
    a('  s_waitcnt vmcnt(0) lgkmcnt(0)')
    E, WOF = 64, 128
    a('  v_lshrrev_b32 v24, 5, v0')
    a('  v_lshlrev_b32 v24, 6, v24')
    a('  v_lshlrev_b32 v25, 5, v0')
    for r in (29, 31, 33, 35, 37, 39):
        a(f'  v_mov_b32 v{r}, {vTagV}')
    a(f'  s_lshl_b32 {sT1}, {sL}, 12')
    a(f'  s_add_u32 {sT1}, {sT1}, {BLK}')
    a(f'  s_lshl_b32 s41, {sL}, 5')
    a(f'  s_add_u32 s41, s41, {GML}')
    a('L_dwait:')
    a(f'  ds_read_b32 v26, {vCtl} offset:{L_DONE-L_CNT}')
    a('  s_waitcnt lgkmcnt(0)')
    a(f'  v_readfirstlane_b32 {sT0}, v26')
    a(f'  s_cmp_lt_u32 {sT0}, 7')
    a('  s_cbranch_scc1 L_dwait')
    ML = E + 32
    for k in range(4):
        a(f'  ds_read_b128 {vr(ML+4*k)}, v24 offset:{L_ML+16*k}')
    for k in range(1, 8):
        a(f'  ds_read_b128 {vr(E+4*k)}, {vL16} offset:{L_OP+1024*k}')
    a('  s_waitcnt lgkmcnt(7)')
    a(f'  v_max3_f32 v36, v{ML+2}, v{ML+4}, v{ML+6}')
    a(f'  v_max3_f32 v36, v36, v{ML+8}, v{ML+10}')
    a(f'  v_max3_f32 v36, v36, v{ML+12}, v{ML+14}')
    a(f'  v_mul_f32 v26, {sNLog2e}, v36')
    for k in range(1, 8):
        a(f'  v_fma_f32 v{ML+2*k}, v{ML+2*k}, {sLog2e}, v26')
    for k in range(1, 8):
        a(f'  v_exp_f32 v{ML+2*k}, v{ML+2*k}')
    a(f'  v_mul_f32 v38, v{ML+2}, v{ML+3}')
    for k in range(2, 8):
        a(f'  v_fmac_f32 v38, v{ML+2*k}, v{ML+2*k+1}')
    a('  s_waitcnt lgkmcnt(0)')
    for r in range(4):
        a(f'  v_mul_f32 v{28+2*r}, v{ML+2}, v{E+4+r}')
    for k in range(2, 8):
        for r in range(4):
            a(f'  v_fmac_f32 v{28+2*r}, v{ML+2*k}, v{E+4*k+r}')
    a(f'  buffer_store_dwordx4 v[28:31], v25, {WS_}, {sT1} offen sc1')
    a(f'  buffer_store_dwordx4 v[32:35], v25, {WS_}, {sT1} offen offset:16 sc1')
    a('  v_lshrrev_b32 v24, 2, v24')
    a('  s_mov_b32 exec_lo, 1')
    a('  s_mov_b32 exec_hi, 1')
    a(f'  buffer_store_dwordx4 v[36:39], v24, {WS_}, s41 offen sc1')
    a('  s_mov_b64 exec, -1')
    stamp('pub1')
    a('  s_branch L_tail')

    a('.p2align 6')
    a('L_done:')
    stamp('loopend')
    tmp = f'v{T}'
    for p in ['v_permlane32_swap_b32', 'v_permlane16_swap_b32']:
        a(f'  v_mov_b32 {tmp}, {vLs}')
        a('  s_nop 1')
        a(f'  {p} {tmp}, {vLs}')
        a(f'  v_add_f32 {vLs}, {vLs}, {tmp}')
    a('  v_and_b32 v24, 15, v0')
    a('  v_lshlrev_b32 v24, 5, v24')
    a('  v_bfe_u32 v25, v0, 4, 1')
    a('  v_lshl_add_u32 v24, v25, 4, v24')
    a('  v_lshrrev_b32 v25, 5, v0')
    a('  v_lshl_add_u32 v24, v25, 9, v24')
    a(f'  s_lshl_b32 {sT0}, {sW}, 10')
    a(f'  v_add_u32 v24, {sT0}, v24')
    a(f'  ds_write_b128 v24, {vr(O)} offset:{L_OP}')
    a('  v_bfe_u32 v24, v0, 3, 1')
    a('  v_lshlrev_b32 v24, 6, v24')
    a(f'  s_lshl_b32 {sT0}, {sW}, 3')
    a(f'  v_add_u32 v24, {sT0}, v24')
    a(f'  v_mov_b32 v26, {vM}')
    a(f'  v_mov_b32 v27, {vLs}')
    a('  v_mov_b32 v28, 1')
    a('  s_mov_b64 exec, 0x101')
    a(f'  ds_write_b64 v24, v[26:27] offset:{L_ML}')
    a('  s_mov_b64 exec, 1')
    a('  s_waitcnt lgkmcnt(0)')
    a(f'  ds_add_u32 {vCtl}, v28 offset:{L_DONE-L_CNT}')
    a('  s_mov_b64 exec, -1')
    a(f'  s_cmp_lg_u32 {sW}, 3')
    a('  s_cbranch_scc1 L_nodma')
    a('  v_mul_u32_u24 v34, 57, v0')
    a('  v_lshrrev_b32 v34, 9, v34')
    a('  v_mul_u32_u24 v35, 9, v34')
    a('  v_sub_u32 v35, v0, v35')
    a('  v_lshlrev_b32 v35, 4, v35')
    a('  v_mul_u32_u24 v34, 1152, v34')
    a('  v_add_u32 v34, v34, v35')
    a(f'  s_mul_i32 s64, {sHKV}, {256*1152}')
    a(f'  s_mul_i32 {sT1}, {sC}, 144')
    a(f'  s_add_u32 s64, s64, {sT1}')
    a(f'  s_mov_b32 s65, {L_WO}')
    a('  s_waitcnt vmcnt(0)')
    a('L_fwait:')
    a(f'  ds_read_b64 v[36:37], {vCtl}')
    a('  s_sleep 4')
    a('  s_waitcnt lgkmcnt(0)')
    a(f'  v_readfirstlane_b32 {sT0}, v36')
    a(f'  v_readfirstlane_b32 {sT1}, v37')
    a(f'  s_cmp_lt_u32 {sT0}, {sT1}')
    a('  s_cbranch_scc1 L_fwait')
    stamp('dma0')
    a('L_dmaloop:')
    a('  s_mov_b32 m0, s65')
    a('  s_add_u32 s65, s65, 1008')
    a(f'  buffer_load_dwordx4 v34, {WO_}, s64 offen nt lds')
    a(f'  s_add_u32 s64, s64, {7*1152}')
    a(f'  s_cmp_lt_u32 s65, {L_WO + 37*1008}')
    a('  s_cbranch_scc1 L_dmaloop')
    a('  s_branch L_tail')
    a('L_nodma:')
    a('  s_waitcnt vmcnt(0)')

    a('L_tail:')
    if 'notail' in exp:
        a('  s_branch L_fin')
    a(f'  s_lshl_b32 {sT1}, {sL}, 12')
    a(f'  s_add_u32 {sT1}, {sT1}, {BLK}')
    a('  v_lshrrev_b32 v24, 4, v0')
    a('  v_mul_u32_u24 v24, 1152, v24')
    a('  v_bfe_u32 v25, v0, 2, 2')
    a('  v_mul_u32_u24 v25, 144, v25')
    a('  v_and_b32 v26, 3, v0')
    a('  v_lshlrev_b32 v26, 3, v26')
    a('  v_add3_u32 v24, v24, v25, v26')
    a(f'  s_mul_i32 {sT0}, {sW}, 4608')
    a(f'  v_add_u32 v24, {sT0}, v24')
    a('  v_and_b32 v25, 7, v0')
    a('  v_lshlrev_b32 v27, 12, v25')
    a('  v_lshlrev_b32 v25, 5, v25')
    a('  v_lshrrev_b32 v26, 3, v0')
    a('  v_lshl_add_u32 v26, v26, 5, v27')
    a(f'  s_and_b32 {sT0}, {sT1}, 0xffff8000')
    a(f'  s_lshl_b32 s64, {sW}, 8')
    a(f'  s_add_u32 s64, s64, {sT0}')
    a(f'  s_and_b32 s65, {sL}, 0xf8')
    a('  s_lshl_b32 s65, s65, 5')
    a(f'  s_add_u32 s65, s65, {GML}')
    a(f'  s_lshr_b32 {sT0}, {sW}, 2')
    a(f'  s_lshl_b32 {sT0}, {sT0}, 4')
    a(f'  s_add_u32 s65, s65, {sT0}')
    a(f'  s_mov_b32 {sSpin}, 0')
    a(f'  s_mul_i32 {sT0}, {sW}, 320')
    a('  v_lshlrev_b32 v44, 2, v0')
    a(f'  v_add_u32 v44, {sT0}, v44')
    a('  s_barrier')
    stamp('barx')
    def p1loads():
        a(f'  buffer_load_dwordx4 {vr(E)}, v26, {WS_}, s64 offen sc1')
        a(f'  buffer_load_dwordx4 {vr(E+4)}, v26, {WS_}, s64 offen offset:16 sc1')
        a(f'  buffer_load_dwordx4 {vr(E+8)}, v25, {WS_}, s65 offen sc1')
    p1loads()
    a('  s_waitcnt vmcnt(3)')
    a('  s_barrier')
    stamp('dma1')
    for ct in range(5):
        a(f'  ds_read_b64_tr_b16 {vr(WOF+4*ct,2)}, v24 offset:{L_WO+ct*32}')
        a(f'  ds_read_b64_tr_b16 {vr(WOF+4*ct+2,2)}, v24 offset:{L_WO+ct*32+4*144}')
    a('  s_branch L_chk1')
    a('L_poll1:')
    p1loads()
    a('L_chk1:')
    a('  s_waitcnt vmcnt(0)')
    tagcheck(E, 3, 'L_got1', 'L_poll1', SL1, shrink=True)
    a('L_got1:')
    a('  s_mov_b64 exec, -1')
    stamp('hop1')
    R8 = ['quad_perm:[1,0,3,2]', 'quad_perm:[2,3,0,1]', 'row_half_mirror']
    vm, vl = f'v{E+8}', f'v{E+10}'
    od = [f'v{E+2*r}' for r in range(4)]
    a(f'  v_mov_b32 v34, {vm}')
    for m in R8:
        a('  s_nop 1')
        a(f'  v_max_f32_dpp v34, v34, v34 {m}{DPPM}')
    a(f'  v_sub_f32 {vm}, {vm}, v34')
    a(f'  v_mul_f32 {vm}, {sLog2e}, {vm}')
    a(f'  v_exp_f32 {vm}, {vm}')
    a('  s_nop 0')
    a(f'  v_mul_f32 {vl}, {vl}, {vm}')
    for r in range(4):
        a(f'  v_mul_f32 {od[r]}, {od[r]}, {vm}')
    for m in R8:
        a(f'  v_add_f32_dpp {vl}, {vl}, {vl} {m}{DPPM}')
        for r in range(4):
            a(f'  v_add_f32_dpp {od[r]}, {od[r]}, {od[r]} {m}{DPPM}')
    a(f'  v_rcp_f32 {vl}, {vl}')
    a('  s_nop 0')
    for r in range(4):
        a(f'  v_mul_f32 {od[r]}, {od[r]}, {vl}')
    a(f'  v_cvt_pk_bf16_f32 v40, {od[0]}, {od[1]}')
    a(f'  v_cvt_pk_bf16_f32 v41, {od[2]}, {od[3]}')
    a('  s_nop 1')
    a(f'  v_mov_b32_dpp v42, v40 row_ror:8{DPPM}')
    a(f'  v_mov_b32_dpp v43, v41 row_ror:8{DPPM}')
    a('  s_waitcnt lgkmcnt(0)')
    a('  s_nop 0')
    for ct in range(5):
        a(f'  v_mfma_f32_16x16x32_bf16 {vr(E+16+4*ct)}, v[40:43], {vr(WOF+4*ct)}, 0')
    a('  s_mov_b64 exec, 0xffff')
    a('  s_nop 7')
    for ct in range(5):
        a(f'  ds_write_b32 v44, v{E+16+4*ct} offset:{L_Y+64*ct}')
    a('  s_mov_b64 exec, -1')
    a('  s_waitcnt lgkmcnt(0)')
    a('  s_barrier')
    a(f'  s_cmp_lg_u32 {sW}, 0')
    a('  s_cbranch_scc1 L_fin')
    a('  v_lshlrev_b32 v24, 3, v0')
    a('  s_mov_b32 exec_hi, 0xf')
    for k in range(8):
        a(f'  ds_read_b64 {vr(E+2*k,2)}, v24 offset:{L_Y+320*k}')
    a(f'  v_mov_b32 v29, {vTagV}')
    a(f'  v_mov_b32 v31, {vTagV}')
    a('  s_waitcnt lgkmcnt(6)')
    a(f'  v_add_f32 v28, v{E}, v{E+2}')
    a(f'  v_add_f32 v30, v{E+1}, v{E+3}')
    for k in range(2, 8):
        a(f'  s_waitcnt lgkmcnt({7-k})')
        a(f'  v_add_f32 v28, v28, v{E+2*k}')
        a(f'  v_add_f32 v30, v30, v{E+2*k+1}')
    a(f'  buffer_store_dwordx4 v[28:31], {vL16}, {WS_}, {sT1} offen offset:{B_Y} sc1')
    stamp('pub2')
    a(f'  s_lshl_b32 {sT0}, {sC}, 1')
    a(f'  s_add_u32 {sT0}, {sT0}, {sB}')
    a(f'  s_cmp_lg_u32 {sT0}, {sHKV}')
    a('  s_cbranch_scc1 L_fin')
    srd(60, 's24', 's25', 2304)
    a(f'  s_mul_i32 {sT0}, {sC}, 144')
    a(f'  s_mul_i32 {sT1}, {sB}, 1152')
    a(f'  s_add_u32 {sT0}, {sT0}, {sT1}')
    a(f'  v_lshl_add_u32 v51, v0, 2, {sT0}')
    a(f'  s_lshl_b32 {sT0}, {sB}, 7')
    a(f'  s_add_u32 {sT0}, {sT0}, {sC}')
    a(f'  s_lshl_b32 {sT0}, {sT0}, 12')
    a(f'  s_add_u32 {sT0}, {sT0}, {BLK}')
    a(f'  s_mov_b32 {sSpin}, 0')
    a('L_poll2:')
    a(f'  s_mov_b32 {sT1}, {sT0}')
    for k in range(16):
        a(f'  buffer_load_dwordx4 {vr(E+4*k)}, {vL16}, {WS_}, {sT1} offen offset:{B_Y} sc1')
        if k < 15:
            a(f'  s_add_u32 {sT1}, {sT1}, 0x8000')
    a('  s_waitcnt vmcnt(0)')
    tagcheck(E, 16, 'L_got2', 'L_poll2', SL2)
    a('L_got2:')
    for k in range(1, 16):
        a(f'  v_add_f32 v{E}, v{E}, v{E+4*k}')
        a(f'  v_add_f32 v{E+2}, v{E+2}, v{E+4*k+2}')
    a(f'  v_cvt_pk_bf16_f32 v30, v{E}, v{E+2}')
    a('  v_lshlrev_b32 v28, 16, v30')
    a('  v_and_b32 v29, 0xffff0000, v30')
    a('  v_lshlrev_b32 v32, 16, v50')
    a('  v_and_b32 v33, 0xffff0000, v50')
    a('  v_add_f32 v28, v28, v32')
    a('  v_add_f32 v29, v29, v33')
    a('  v_cvt_pk_bf16_f32 v30, v28, v29')
    a('  v_lshlrev_b32 v28, 16, v30')
    a('  v_and_b32 v29, 0xffff0000, v30')
    a('  v_add_f32 v28, v28, v48')
    a('  v_add_f32 v29, v29, v49')
    a('  v_cvt_pk_bf16_f32 v30, v28, v29')
    a(f'  buffer_store_dword v30, v51, {OUT_}, 0 offen')
    a(f'  s_cmp_lg_u32 {sL}, 0')
    a('  s_cbranch_scc1 L_fin')
    a('  s_mov_b64 exec, 1')
    a(f'  s_mov_b32 {sT0}, {EP2}')
    a(f'  buffer_store_dword {vTagV}, off, {WS_}, 0')
    a(f'  buffer_store_dword {vTagV}, off, {WS_}, {sT0}')
    a('L_fin:')
    if ts:
        a('  s_waitcnt vmcnt(0)')
        a('  s_memrealtime s[64:65]')
        a('  s_waitcnt lgkmcnt(0)')
        for i in range(8):
            a(f'  v_mov_b32 v{24+i}, s{sTs+i}')
        a('  v_mov_b32 v32, s64')
        a('  v_mov_b32 v33, s65')
        a('  s_lshl_b32 s66, s2, 3')
        a(f'  s_add_u32 s66, s66, {sW}')
        a('  s_lshl_b32 s66, s66, 6')
        a(f'  s_add_u32 s66, s66, {TS_OFF}')
        a('  v_mov_b32 v1, s66')
        a('  s_mov_b64 exec, 1')
        a('  global_store_dwordx4 v1, v[24:27], s[28:29]')
        a('  global_store_dwordx4 v1, v[28:31], s[28:29] offset:16')
        a('  global_store_dwordx2 v1, v[32:33], s[28:29] offset:32')
    a('L_end:')
    a('  s_endpgm')
    body = '\n'.join(o)
    txt = HEADER + f'''; @launch grid=(256,1,1) block=(512,1,1) lds={LDS_BYTES}
.amdgcn_target "amdgcn-amd-amdhsa--gfx950"
.text
.globl {KNAME}
.p2align 8
.type {KNAME},@function
{body}
.section .rodata,"a"
.p2align 6
.amdhsa_kernel {KNAME}
  .amdhsa_next_free_vgpr 256
  .amdhsa_next_free_sgpr 102
  .amdhsa_accum_offset 256
  .amdhsa_group_segment_fixed_size 0
  .amdhsa_kernarg_size 104
  .amdhsa_user_sgpr_count 2
  .amdhsa_user_sgpr_kernarg_segment_ptr 1
  .amdhsa_system_sgpr_workgroup_id_x 1
  .amdhsa_float_denorm_mode_32 3
.end_amdhsa_kernel
'''
    return txt

if __name__ == '__main__':
    out = sys.argv[1]
    ts = 'ts' in sys.argv[2:]
    kw = {}
    for x in sys.argv[2:]:
        if x.startswith('ev='):
            ts = {n: i for i, n in enumerate(x[3:].split(','))}
        elif '=' in x:
            k, v = x.split('='); kw[k] = int(v)
    open(out, 'w').write(gen(ts=ts, exp=sys.argv[2:], **kw))
    print('lds', LDS_BYTES)
```

```python
import sys, struct, math

NAME = 'parallel_sum__gqa_block_cached__mixer_token_mlp__decode'
KNAME = NAME + '_kernel'

def f32(x):
    return '0x%08x' % struct.unpack('<I', struct.pack('<f', x))[0]

LOG2E = 1.4426950408889634
SCALE = 128 ** -0.5
K0 = math.sqrt(2.0 / math.pi)
GC0 = -2.0 * LOG2E * K0
GC1 = GC0 * 0.044715

HEADER = open('cdna_kernels/%s.s.ref' % NAME).read().split('; Override launch geometry')[0]

L_Q = 0
L_CNT = 512
L_FIN = 516
L_FLAG = 520
L_DONE = 524
L_ZERO = 528
L_TAG = 532
L_ML = 1024
L_Y = 1280
L_OP = 4096
L_POOL = 12288
L_WO = 14336
LDS_BYTES = (L_WO + 37 * 1008 + 64 + 255) // 256 * 256

QBOX = 4096
BLK = 2 << 20
B_O, B_Y, B_B, B_CTR = 0, 2304, 3072, 3840
GML = BLK + 256 * 4096
EP2 = GML + 32 * 256
WS_BYTES = EP2 + 256
TS_OFF = 1 << 20
INVALID = 0x40000000

def gen(ts=False, exp=(), D=3, NSTREAM=2, THR=1, NB1=3, BG=150, P=24, R=10, G=3, DK=64, SL1=4, SL2=2):
    o = []
    a = o.append
    NS = 256 - P
    DPPM = ' row_mask:0xf bank_mask:0xf'
    sW = 's3'
    sHKV, sB, sC, sL = 's30', 's31', 's32', 's2'
    sMask = 's33'
    sT0, sT1 = 's34', 's35'
    K_, V_, X_, WQ_, WO_, WS_, OUT_ = [f's[{i}:{i+3}]' for i in range(36, 64, 4)]
    def srd(base, lo, hi, nrec):
        a(f'  s_mov_b32 s{base}, {lo}')
        a(f'  s_and_b32 s{base+1}, {hi}, 0xffff')
        a(f'  s_mov_b32 s{base+2}, {nrec}')
        a(f'  s_mov_b32 s{base+3}, 0x20000')
    sOff = [f's{64+i}' for i in range(6)]
    sScale, sLog2e, sNLog2e, sGC1 = 's70', 's71', 's72', 's73'
    sSame = 's[74:75]'
    sTag, sIdx, sSpin, sB2 = 's76', 's77', 's78', 's79'
    sU = [f's{80+i}' for i in range(14)]
    sForce = 's80'
    sTs = 94
    vKoff, vVoff, vTick, vCnt = 'v1', 'v2', 'v3', 'v4'
    SEL = 5
    vM, vNegM, vLs = 'v13', 'v14', 'v15'
    O, S, AF, T, QF, RING = 16, 20, 24, 40, 48, 64
    vInc, vTagV, vL16, vCtl = 'v255', 'v254', 'v253', 'v252'
    assert D <= 5
    def vr(b, n=4): return f'v[{b}:{b+n-1}]'
    EV = {'start': 0, 'qready': 1, 'loopend': 2, 'hop1': 3}
    if isinstance(ts, dict): EV = ts
    def stamp(name):
        if ts and name in EV:
            i = EV[name]
            a(f'  s_memrealtime s[{sTs+2*i}:{sTs+2*i+1}]')
    def rnd(v):
        a(f'  v_cvt_pk_bf16_f32 {v}, {v}, {v}')
        a(f'  v_and_b32 {v}, 0xffff0000, {v}')
    def selectors(t0, t1, t2, t3):
        a(f'  v_and_b32 {t0}, 1, v0')
        a(f'  v_cmp_eq_u32 vcc, 1, {t0}')
        a(f'  v_mov_b32 {t0}, 0x0c0c0100')
        a(f'  v_mov_b32 {t1}, 0x01000c0c')
        a(f'  v_cndmask_b32 {t0}, {t0}, {t1}, vcc')
        a(f'  v_mov_b32 {t1}, 0x0c0c0302')
        a(f'  v_mov_b32 {t2}, 0x03020c0c')
        a(f'  v_cndmask_b32 {t1}, {t1}, {t2}, vcc')
        a(f'  v_bfe_u32 {t2}, v0, 1, 2')
        a(f'  v_mov_b32 {t3}, 0x0c0c0c0c')
        for d in range(4):
            a(f'  v_cmp_eq_u32 vcc, {d}, {t2}')
            a(f'  s_nop 1')
            a(f'  v_cndmask_b32 v{SEL+d}, {t3}, {t0}, vcc')
            a(f'  v_cndmask_b32 v{SEL+4+d}, {t3}, {t1}, vcc')
    def consts():
        a(f'  s_mov_b32 {sLog2e}, {f32(LOG2E)}')
        a(f'  s_mov_b32 {sNLog2e}, {f32(-LOG2E)}')
        a(f'  v_lshlrev_b32 {vL16}, 4, v0')
    def tagcheck(base, n, lbl_ok, lbl_retry, sl=1, shrink=False):
        tags = [f'v{base+2*k+1}' for k in range(2*n)]
        a(f'  v_max_u32 v35, {tags[0]}, {tags[1]}')
        a(f'  v_min_u32 v36, {tags[0]}, {tags[1]}')
        for k in range(2, 2*n, 2):
            a(f'  v_max3_u32 v35, v35, {tags[k]}, {tags[k+1]}')
            a(f'  v_min3_u32 v36, v36, {tags[k]}, {tags[k+1]}')
        a(f'  v_xor_b32 v35, v35, {vTagV}')
        a(f'  v_xor_b32 v36, v36, {vTagV}')
        a('  v_or_b32 v35, v35, v36')
        a('  v_cmp_ne_u32 vcc, 0, v35')
        a(f'  s_cbranch_vccz {lbl_ok}')
        if shrink:
            a('  s_mov_b64 exec, vcc')
        a(f'  s_sleep {sl}')
        a(f'  s_add_u32 {sSpin}, {sSpin}, 1')
        a(f'  s_cmp_lt_u32 {sSpin}, 0x8000')
        a(f'  s_cbranch_scc1 {lbl_retry}')

    a(f'{KNAME}:')
    a('  s_cmp_ge_u32 s2, 256')
    a('  s_cbranch_scc1 L_end')
    a('  s_load_dwordx16 s[4:19], s[0:1], 0')
    a('  s_load_dwordx8 s[20:27], s[0:1], 64')
    a('  s_load_dwordx2 s[28:29], s[0:1], 96')
    if ts:
        for i in range(8):
            a(f'  s_mov_b32 s{sTs+i}, 0')
    stamp('start')
    a('  v_lshrrev_b32 v1, 6, v0')
    a('  v_and_b32 v0, 63, v0')
    a(f'  v_readfirstlane_b32 {sW}, v1')
    a(f'  s_bfe_u32 {sHKV}, s2, 0x40003')
    a(f'  s_lshr_b32 {sB}, s2, 7')
    a(f'  s_and_b32 {sC}, s2, 7')
    a(f'  s_and_b32 {sIdx}, s2, 127')
    for k, (src, dst) in enumerate([(3, 14), (4, 13), (5, 19), (6, 17), (7, 12)]):
        a(f'  s_bfe_u32 {sT0}, s2, {0x10000 | src}')
        if k == 0:
            a(f'  s_lshl_b32 {sMask}, {sT0}, {dst}')
        else:
            a(f'  s_lshl_b32 {sT0}, {sT0}, {dst}')
            a(f'  s_or_b32 {sMask}, {sMask}, {sT0}')
    a('  v_and_b32 v24, 15, v0')
    a('  v_lshrrev_b32 v25, 4, v0')
    a('  v_lshlrev_b32 v27, 4, v24')
    a(f'  v_mov_b32 {vCtl}, {L_CNT}')
    a(f'  s_cmp_eq_u32 {sW}, 0')
    a('  s_cbranch_scc1 L_helper')

    a('  v_and_b32 v26, 7, v0')
    a('  v_lshlrev_b32 v26, 8, v26')
    a('  v_lshl_add_u32 v26, v25, 4, v26')
    a('  v_bfe_u32 v28, v0, 3, 1')
    a(f'  v_lshl_add_u32 {vKoff}, v28, 15, v26')
    a('  v_bfe_u32 v28, v0, 4, 1')
    a('  v_lshl_add_u32 v26, v28, 10, v27')
    a('  v_lshrrev_b32 v28, 5, v0')
    a(f'  v_lshl_add_u32 {vVoff}, v28, 15, v26')
    a(f'  s_lshr_b32 {sT0}, s2, 3')
    a(f'  s_lshl_b32 {sT0}, {sT0}, 23')
    a('  s_mov_b32 s38, 0x800000')
    a('  s_mov_b32 s42, 0x800000')
    a('  s_mov_b32 s39, 0x20000')
    a('  s_mov_b32 s43, 0x20000')
    a(f'  s_lshl_b32 {sForce}, {sC}, 20')
    a(f'  s_or_b32 {sForce}, {sForce}, {sMask}')
    a(f'  s_sub_u32 {sU[2]}, {sW}, 1')
    a(f'  s_lshl_b32 {sU[2]}, {sU[2]}, 11')
    for d in range(D):
        a(f'  s_and_b32 {sT1}, {sU[2]}, 0xffff8000')
        a(f'  s_add_u32 {sOff[d]}, {sU[2]}, {sT1}')
        a(f'  s_xor_b32 {sOff[d]}, {sOff[d]}, {sForce}')
        if d < D - 1:
            a(f'  s_add_u32 {sU[2]}, {sU[2]}, {7<<11}')
    a('  s_waitcnt lgkmcnt(0)')
    a(f'  s_add_u32 s36, s6, {sT0}')
    a('  s_addc_u32 s37, s7, 0')
    a('  s_and_b32 s37, s37, 0xffff')
    a(f'  s_add_u32 s40, s8, {sT0}')
    a('  s_addc_u32 s41, s9, 0')
    a('  s_and_b32 s41, s41, 0xffff')
    def loadK(slot):
        for n in range(4):
            a(f'  buffer_load_dwordx4 {vr(RING+slot*32+n*4)}, {vKoff}, {K_}, {sOff[slot]} offen offset:{n*64} nt')
    def loadV(slot):
        for n in range(4):
            a(f'  buffer_load_dwordx4 {vr(RING+slot*32+16+n*4)}, {vVoff}, {V_}, {sOff[slot]} offen offset:{n*256} nt')
    a('  s_barrier')
    loadK(0)
    srd(56, 's28', 's29', WS_BYTES)
    srd(52, 's12', 's13', 4096 * 1152)
    consts()
    a(f'  s_mov_b32 {sScale}, {f32(SCALE)}')
    a('  s_mov_b32 s74, 0x00ff00ff')
    a('  s_mov_b32 s75, 0xff00ff00')
    selectors('v26', 'v27', 'v28', 'v29')
    a(f'  s_cmp_le_u32 {sW}, {NSTREAM}')
    a(f'  s_cselect_b32 {sT0}, 2048, 0')
    a(f'  s_cselect_b32 {sT1}, 0, {INVALID}')
    a(f'  s_or_b32 {sForce}, {sForce}, {sT1}')
    a(f'  v_mov_b32 {vInc}, {sT0}')
    a(f'  s_cmp_le_u32 {sW}, {NSTREAM}')
    a(f'  s_cselect_b32 {sT0}, 0, {L_ZERO-L_CNT}')
    a(f'  v_add_u32 {vCnt}, {sT0}, {vCtl}')
    a(f'  v_mov_b32 {vM}, {f32(-1e30)}')
    a(f'  v_mov_b32 {vNegM}, {f32(1e30*LOG2E)}')
    a(f'  v_mov_b32 {vLs}, 0')
    for r in range(4):
        a(f'  v_mov_b32 v{O+r}, 0')
    a('  v_bfe_u32 v26, v0, 3, 1')
    a('  v_lshlrev_b32 v26, 8, v26')
    a('  v_lshl_add_u32 v26, v25, 4, v26')
    for d in range(D):
        if d > 0:
            a(f'  s_waitcnt vmcnt({THR})')
            loadK(d)
        a(f'  s_waitcnt vmcnt({THR})')
        loadV(d)
    stamp('issued')
    a('L_qwait:')
    a(f'  ds_read_b32 v27, {vCtl} offset:{L_FLAG-L_CNT}')
    a('  s_waitcnt lgkmcnt(0)')
    a(f'  v_readfirstlane_b32 {sT0}, v27')
    a(f'  s_cmp_eq_u32 {sT0}, 1')
    a('  s_cbranch_scc1 L_qgot')
    a('  s_sleep 2')
    a('  s_branch L_qwait')
    a('L_qgot:')
    for j in range(4):
        a(f'  ds_read_b128 {vr(QF+4*j)}, v26 offset:{L_Q+64*j}')
    a(f'  ds_read_b32 {vTagV}, {vCtl} offset:{L_TAG-L_CNT}')
    a('  s_waitcnt lgkmcnt(0)')
    stamp('qready')

    rare = []
    NW = 8 * D - 4
    def tile(slot):
        kb = RING + slot * 32
        vb = kb + 16
        t = [f'v{T+i}' for i in range(4)]
        mx, tmp = f'v{T+4}', f'v{T+5}'
        pb = [f'v{T+6}', f'v{T+7}']
        a(f'  s_cmp_ge_u32 {sOff[slot]}, 0x800000')
        a('  s_cbranch_scc1 L_done')
        a(f'  s_waitcnt vmcnt({NW})')
        a('  s_mov_b64 exec, 1')
        a(f'  ds_add_rtn_u32 {vTick}, {vCnt}, {vInc}')
        a('  s_mov_b64 exec, -1')
        for j in range(4):
            c = '0' if j == 0 else vr(S)
            a(f'  v_mfma_f32_16x16x32_bf16 {vr(S)}, {vr(kb+4*j)}, {vr(QF+4*j)}, {c}')
        a('  s_waitcnt lgkmcnt(0)')
        a(f'  v_readfirstlane_b32 {sT0}, {vTick}')
        a(f'  s_cmp_ge_u32 {sT0}, {NS<<11}')
        a(f'  s_cbranch_scc1 L_pool{slot}')
        a(f'  s_and_b32 {sT1}, {sT0}, 0xffff8000')
        a(f'  s_add_u32 {sT0}, {sT0}, {sT1}')
        a(f'  s_xor_b32 {sOff[slot]}, {sT0}, {sForce}')
        a(f'L_pback{slot}:')
        loadK(slot)
        a(f'  v_cvt_pk_bf16_f32 {t[0]}, v{S}, v{S+1}')
        a(f'  v_cvt_pk_bf16_f32 {t[2]}, v{S+2}, v{S+3}')
        def unpack():
            a(f'  v_and_b32 {t[1]}, 0xffff0000, {t[0]}')
            a(f'  v_lshlrev_b32 {t[0]}, 16, {t[0]}')
            a(f'  v_and_b32 {t[3]}, 0xffff0000, {t[2]}')
            a(f'  v_lshlrev_b32 {t[2]}, 16, {t[2]}')
        unpack()
        for i in range(4):
            a(f'  v_mul_f32 {t[i]}, {sScale}, {t[i]}')
        a(f'  v_cvt_pk_bf16_f32 {t[0]}, {t[0]}, {t[1]}')
        a(f'  v_cvt_pk_bf16_f32 {t[2]}, {t[2]}, {t[3]}')
        unpack()
        a(f'  v_max3_f32 {mx}, {t[0]}, {t[1]}, {t[2]}')
        a(f'  v_max_f32 {mx}, {mx}, {t[3]}')
        a(f'  v_cmp_gt_f32 vcc, {mx}, {vM}')
        a(f'  s_cbranch_vccnz L_rare{slot}')
        a(f'L_back{slot}:')
        for i in range(4):
            a(f'  v_fma_f32 {t[i]}, {t[i]}, {sLog2e}, {vNegM}')
        for i in range(4):
            a(f'  v_exp_f32 {t[i]}, {t[i]}')
        a(f'  v_cvt_pk_bf16_f32 {pb[0]}, {t[0]}, {t[1]}')
        a(f'  v_add_f32 {tmp}, {t[0]}, {t[1]}')
        a(f'  v_cvt_pk_bf16_f32 {pb[1]}, {t[2]}, {t[3]}')
        a(f'  v_add_f32 {mx}, {t[2]}, {t[3]}')
        for r in range(4):
            for d in range(4):
                a(f'  v_perm_b32 v{AF+4*r+d}, {pb[r//2]}, {pb[r//2]}, v{SEL+(r&1)*4+d}')
        a(f'  v_add_f32 {tmp}, {tmp}, {mx}')
        a(f'  v_add_f32 {vLs}, {vLs}, {tmp}')
        a(f'  s_waitcnt vmcnt({NW})')
        for r in range(4):
            a(f'  v_mfma_f32_16x16x32_bf16 {vr(O)}, {vr(AF+4*r)}, {vr(vb+4*r)}, {vr(O)}')
        loadV(slot)
        r_ = rare.append
        r_(f'L_rare{slot}:')
        for p in ['v_permlane32_swap_b32', 'v_permlane16_swap_b32']:
            r_(f'  v_mov_b32 {tmp}, {mx}')
            r_('  s_nop 1')
            r_(f'  {p} {tmp}, {mx}')
            r_(f'  v_max_f32 {mx}, {mx}, {tmp}')
        r_(f'  v_max_f32 {mx}, {mx}, {vM}')
        r_(f'  v_sub_f32 {tmp}, {vM}, {mx}')
        r_(f'  v_mul_f32 {tmp}, {sLog2e}, {tmp}')
        r_(f'  v_exp_f32 {tmp}, {tmp}')
        r_(f'  v_mov_b32 {vM}, {mx}')
        r_(f'  v_mul_f32 {vNegM}, {sNLog2e}, {mx}')
        r_(f'  v_mul_f32 {vLs}, {vLs}, {tmp}')
        r_(f'  v_mov_b32_dpp {mx}, {tmp} row_ror:8{DPPM}')
        r_(f'  v_cndmask_b32 {mx}, {mx}, {tmp}, {sSame}')
        for r in range(4):
            r_(f'  v_mul_f32 v{O+r}, v{O+r}, {mx}')
        r_(f'  s_branch L_back{slot}')
        r_(f'L_pool{slot}:')
        r_(f'  s_sub_u32 {sT0}, {sT0}, {NS<<11}')
        r_(f'  s_lshr_b32 {sT0}, {sT0}, 9')
        r_(f'  v_mov_b32 {mx}, {sT0}')
        r_(f'L_pspin{slot}:')
        r_(f'  ds_read_b32 {vTick}, {mx} offset:{L_POOL}')
        r_('  s_waitcnt lgkmcnt(0)')
        r_(f'  v_readfirstlane_b32 {sT1}, {vTick}')
        r_(f'  s_mov_b32 {sOff[slot]}, {sT1}')
        r_(f'  s_cmp_lg_u32 {sT1}, -1')
        r_(f'  s_cbranch_scc1 L_pback{slot}')
        r_('  s_sleep 1')
        r_(f'  s_branch L_pspin{slot}')
    a('.p2align 6')
    a('L_loop:')
    for d in range(D):
        tile(d)
    a('  s_branch L_loop')
    o += rare

    a('.p2align 6')
    a('L_helper:')
    a('  s_setprio 3')
    XA, XB, XF, WQ, GQ = 64, 74, 84, 104, 176
    vXC = 'v73'
    a('  v_bfe_u32 v26, v0, 3, 1')
    a('  v_mul_u32_u24 v26, 1152, v26')
    a('  v_and_b32 v28, 7, v0')
    a('  v_lshl_add_u32 v28, v25, 3, v28')
    a('  v_mad_u32_u24 v28, v28, 36, v26')
    a('  v_mad_u32_u24 v29, v25, 36, v26')
    a('  v_mul_u32_u24 v30, 0x24000, v25')
    a('  v_add_u32 v30, v30, v27')
    a('  v_lshlrev_b32 v31, 1, v0')
    a(f'  v_mov_b32 v32, {(7*D)<<11}')
    a('  v_mov_b32 v33, -1')
    a('  v_mov_b32 v34, 0')
    a('  v_mov_b32 v35, 0')
    a(f'  ds_write_b128 {vCtl}, v[32:35]')
    a(f'  ds_write_b32 {vCtl}, v34 offset:{L_ZERO-L_CNT}')
    sRG, sCG, sI16 = sU[0], sU[1], sU[2]
    a(f'  s_lshl_b32 {sI16}, {sB}, 3')
    a(f'  s_or_b32 {sI16}, {sI16}, {sC}')
    a(f'  s_lshr_b32 {sRG}, {sI16}, 1')
    a(f'  s_and_b32 {sCG}, {sI16}, 1')
    a(f'  s_mul_i32 {sT1}, {sRG}, 144')
    a(f'  s_mul_i32 {sT0}, {sRG}, {72*8192}')
    a(f'  s_lshl_b32 {sU[3]}, {sHKV}, 9')
    a(f'  s_add_u32 {sT0}, {sT0}, {sU[3]}')
    a(f'  s_lshl_b32 {sU[3]}, {sCG}, 8')
    a(f'  s_add_u32 {sT0}, {sT0}, {sU[3]}')
    a('  s_mov_b32 s46, 2304')
    a('  s_mov_b32 s47, 0x20000')
    a(f'  s_mov_b32 s50, {576*8192}')
    a('  s_mov_b32 s51, 0x20000')
    a(f'  s_mov_b32 s58, {WS_BYTES}')
    a('  s_mov_b32 s59, 0x20000')
    a('  s_waitcnt lgkmcnt(0)')
    a('  s_mov_b32 s44, s4')
    a('  s_and_b32 s45, s5, 0xffff')
    a('  s_mov_b32 s48, s10')
    a('  s_and_b32 s49, s11, 0xffff')
    a('  s_mov_b32 s56, s28')
    a('  s_and_b32 s57, s29, 0xffff')
    a(f'  buffer_load_dwordx4 {vr(XA)}, v28, {X_}, 0 offen')
    a(f'  buffer_load_dwordx4 {vr(XA+4)}, v28, {X_}, 0 offen offset:16')
    a(f'  buffer_load_dword v{XA+8}, v28, {X_}, 0 offen offset:32')
    a(f'  buffer_load_dwordx4 {vr(XB)}, v29, {X_}, {sT1} offen')
    a(f'  buffer_load_dwordx4 {vr(XB+4)}, v29, {X_}, {sT1} offen offset:16')
    a(f'  buffer_load_dword v{XB+8}, v29, {X_}, {sT1} offen offset:32')
    for n in range(18):
        a(f'  buffer_load_dwordx4 {vr(WQ+4*n)}, v30, {WQ_}, {sT0} offen nt')
        if n < 17:
            a(f'  s_add_u32 {sT0}, {sT0}, 8192')
    a('  s_barrier')
    a(f'  s_load_dword {sTag}, s[28:29], 0')
    a(f'  s_add_u32 {sU[4]}, s28, {EP2}')
    a(f'  s_addc_u32 {sU[5]}, s29, 0')
    a(f'  s_load_dword {sSpin}, s[84:85], 0')
    a(f'  s_load_dword {sB2}, s[22:23], 0')
    sFG, sOS = sU[6], sU[7]
    a(f'  s_mul_i32 {sFG}, {sIdx}, 57')
    a(f'  s_lshr_b32 {sFG}, {sFG}, 9')
    a(f'  s_mul_i32 {sT0}, {sFG}, 9')
    a(f'  s_sub_u32 {sOS}, {sIdx}, {sT0}')
    a(f'  s_min_u32 {sFG}, {sFG}, 11')
    a(f'  s_mul_i32 {sT0}, {sB}, 1152')
    a(f'  s_lshl_b32 {sT1}, {sOS}, 7')
    a(f'  s_add_u32 {sT0}, {sT0}, {sT1}')
    a(f'  buffer_load_ushort {vXC}, v31, {X_}, {sT0} offen')
    stamp('issued')
    consts()
    srd(52, 's12', 's13', 4096 * 1152)
    a(f'  s_mov_b32 {sGC1}, {f32(GC1)}')
    selectors('v26', 'v27', 'v28', 'v29')
    a('  v_mov_b32 v32, -1')
    a('  v_mov_b32 v34, -1')
    a('  v_mov_b32 v35, -1')
    a(f'  ds_write_b128 {vL16}, v[32:35] offset:{L_POOL}')
    a(f'  ds_write_b128 {vL16}, v[32:35] offset:{L_POOL+1024}')
    def half_sum(v, t):
        for m in ['quad_perm:[1,0,3,2]', 'quad_perm:[2,3,0,1]', 'row_half_mirror']:
            a('  s_nop 1')
            a(f'  v_add_f32_dpp {v}, {v}, {v} {m}{DPPM}')
        for p in ['v_permlane16_swap_b32', 'v_permlane32_swap_b32']:
            a(f'  v_mov_b32 {t}, {v}')
            a('  s_nop 1')
            a(f'  {p} {t}, {v}')
            a(f'  v_add_f32 {v}, {v}, {t}')
    def ln_stats(mu, rd, t0, t1, t2):
        a(f'  v_add_f32 {t0}, v{XF}, v{XF+1}')
        a(f'  v_add_f32 {t1}, v{XF+2}, v{XF+3}')
        for k in range(4, 18, 2):
            a(f'  v_add_f32 {t0}, {t0}, v{XF+k}')
            a(f'  v_add_f32 {t1}, {t1}, v{XF+k+1}')
        a(f'  v_add_f32 {t0}, {t0}, {t1}')
        half_sum(t0, t1)
        a(f'  v_mul_f32 {mu}, {f32(1.0/576)}, {t0}')
        for k in range(18):
            tt = t1 if k & 1 else t2
            a(f'  v_sub_f32 {tt}, v{XF+k}, {mu}')
            if k == 0:
                a(f'  v_mul_f32 {t0}, {tt}, {tt}')
            else:
                a(f'  v_fmac_f32 {t0}, {tt}, {tt}')
        half_sum(t0, t1)
        a(f'  v_mul_f32 {t0}, {f32(1.0/576)}, {t0}')
        rnd(t0)
        a(f'  v_add_f32 {t0}, {f32(1e-5)}, {t0}')
        rnd(t0)
        a(f'  v_sqrt_f32 {t0}, {t0}')
        a('  s_nop 0')
        rnd(t0)
        a(f'  v_rcp_f32 {rd}, {t0}')
        rnd(mu)
    def norm_pair(lo, hi, dst, mu, rd):
        a(f'  v_sub_f32 {lo}, {lo}, {mu}')
        a(f'  v_sub_f32 {hi}, {hi}, {mu}')
        a(f'  v_cvt_pk_bf16_f32 {lo}, {lo}, {hi}')
        a(f'  v_and_b32 {hi}, 0xffff0000, {lo}')
        a(f'  v_lshlrev_b32 {lo}, 16, {lo}')
        a(f'  v_mul_f32 {lo}, {lo}, {rd}')
        a(f'  v_mul_f32 {hi}, {hi}, {rd}')
        a(f'  v_cvt_pk_bf16_f32 {dst}, {lo}, {hi}')
    a('  s_waitcnt vmcnt(22)')
    stamp('xarr')
    for k in range(9):
        a(f'  v_lshlrev_b32 v{XF+2*k}, 16, v{XA+k}')
        a(f'  v_and_b32 v{XF+2*k+1}, 0xffff0000, v{XA+k}')
    vMu, vRd = 'v32', 'v33'
    a('  s_waitcnt lgkmcnt(0)')
    ln_stats(vMu, vRd, 'v34', 'v35', 'v36')
    a('  s_waitcnt vmcnt(19)')
    a(f'  s_mul_i32 {sTag}, {sTag}, 1664525')
    a(f'  s_add_u32 {sTag}, {sTag}, 1013904223')
    a(f'  s_mul_i32 {sSpin}, {sSpin}, 0x9e3779b4')
    a(f'  s_add_u32 {sTag}, {sTag}, {sSpin}')
    a(f'  v_mov_b32 {vTagV}, {sTag}')
    for k in range(9):
        r = XB + k
        a(f'  v_lshlrev_b32 v34, 16, v{r}')
        a(f'  v_and_b32 v35, 0xffff0000, v{r}')
        norm_pair('v34', 'v35', f'v{r}', vMu, vRd)
        for hh in range(2):
            af = 24 + hh * 4
            for d in range(4):
                a(f'  v_perm_b32 v{af+d}, v{r}, v{r}, v{SEL+hh*4+d}')
        for hh in range(2):
            n = 2 * k + hh
            af = 24 + hh * 4
            if hh == 0:
                a(f'  s_waitcnt vmcnt({17 - 2*k})')
                a('  s_nop 0')
            c = '0' if n == 0 else vr(16)
            a(f'  v_mfma_f32_16x16x32_bf16 {vr(16)}, {vr(af)}, {vr(WQ+4*n)}, {c}')
    a('  v_and_b32 v34, 15, v0')
    a('  v_lshlrev_b32 v34, 6, v34')
    a('  v_bfe_u32 v35, v0, 4, 1')
    a('  v_lshl_add_u32 v34, v35, 5, v34')
    a('  v_lshrrev_b32 v35, 5, v0')
    a('  v_lshl_add_u32 v34, v35, 10, v34')
    a(f'  s_lshl_b32 {sT0}, {sHKV}, 4')
    a(f'  s_add_u32 {sT1}, {sT0}, {sI16}')
    a(f'  s_lshl_b32 {sT1}, {sT1}, 11')
    a(f'  s_add_u32 {sT1}, {sT1}, {QBOX}')
    a(f'  v_mov_b32 v21, {sTag}')
    a(f'  v_mov_b32 v23, {sTag}')
    a('  v_mov_b32 v22, v19')
    a('  v_mov_b32 v20, v18')
    a('  v_mov_b32 v18, v17')
    a(f'  v_mov_b32 v17, {sTag}')
    a(f'  v_mov_b32 v19, {sTag}')
    a(f'  buffer_store_dwordx4 v[16:19], v34, {WS_}, {sT1} offen sc1')
    a(f'  buffer_store_dwordx4 v[20:23], v34, {WS_}, {sT1} offen offset:16 sc1')
    stamp('qpub')
    sMu1, sRd1 = sU[8], sU[9]
    a(f'  s_lshl_b32 {sU[3]}, {sB}, 3')
    a(f'  v_readlane_b32 {sMu1}, {vMu}, {sU[3]}')
    a(f'  v_readlane_b32 {sRd1}, {vRd}, {sU[3]}')
    for k in range(9):
        norm_pair(f'v{XF+2*k}', f'v{XF+2*k+1}', 'v34', vMu, vRd)
        a(f'  v_lshlrev_b32 v{XF+2*k}, 16, v34')
        a(f'  v_and_b32 v{XF+2*k+1}, 0xffff0000, v34')
    ln_stats(vMu, vRd, 'v34', 'v35', 'v36')
    vH = 'v37'
    a('  s_waitcnt vmcnt(2)')
    a(f'  v_lshlrev_b32 {vH}, 16, {vXC}')
    a(f'  v_subrev_f32 {vH}, {sMu1}, {vH}')
    rnd(vH)
    a(f'  v_mul_f32 {vH}, {sRd1}, {vH}')
    rnd(vH)
    a(f'  v_readlane_b32 {sMu1}, {vMu}, {sU[3]}')
    a(f'  v_readlane_b32 {sRd1}, {vRd}, {sU[3]}')
    a('  s_nop 1')
    a(f'  v_subrev_f32 {vH}, {sMu1}, {vH}')
    rnd(vH)
    a(f'  v_mul_f32 {vH}, {sRd1}, {vH}')
    rnd(vH)
    vBacc, vGC0 = 'v39', 'v40'
    a(f'  v_mov_b32 {vBacc}, 0')
    a(f'  v_mov_b32 {vGC0}, {f32(GC0)}')
    sBo, sCnt, sLim = 's36', 's39', 's40'
    a(f'  s_mul_i32 {sBo}, {sFG}, 768')
    a(f'  s_mov_b32 {sCnt}, 0')
    a(f'  s_mov_b32 {sLim}, {NB1}')
    a('L_bloop:')
    a(f'  s_load_dwordx4 s[80:83], s[16:17], {sBo}')
    a(f'  s_load_dwordx4 s[84:87], s[18:19], {sBo}')
    a(f'  s_load_dwordx4 s[88:91], s[20:21], {sBo}')
    a('  s_waitcnt lgkmcnt(0)')
    for k in range(4):
        x0, x1, y0, y1, pk = 'v42', 'v43', 'v44', 'v45', 'v46'
        a(f'  s_lshl_b32 s64, s{80+k}, 16')
        a(f'  s_and_b32 s65, s{80+k}, 0xffff0000')
        a(f'  s_lshl_b32 s66, s{84+k}, 16')
        a(f'  s_and_b32 s67, s{84+k}, 0xffff0000')
        a(f'  s_lshl_b32 s68, s{88+k}, 16')
        a(f'  s_and_b32 s69, s{88+k}, 0xffff0000')
        a(f'  v_mul_f32 {x0}, s64, {vH}')
        a(f'  v_mul_f32 {x1}, s65, {vH}')
        a(f'  v_cvt_pk_bf16_f32 {pk}, {x0}, {x1}')
        a(f'  v_lshlrev_b32 {x0}, 16, {pk}')
        a(f'  v_and_b32 {x1}, 0xffff0000, {pk}')
        a(f'  v_add_f32 {x0}, s66, {x0}')
        a(f'  v_add_f32 {x1}, s67, {x1}')
        a(f'  v_cvt_pk_bf16_f32 {pk}, {x0}, {x1}')
        a(f'  v_lshlrev_b32 {x0}, 16, {pk}')
        a(f'  v_and_b32 {x1}, 0xffff0000, {pk}')
        a(f'  v_mul_f32 {y0}, {x0}, {x0}')
        a(f'  v_mul_f32 {y1}, {x1}, {x1}')
        a(f'  v_fma_f32 {y0}, {y0}, {sGC1}, {vGC0}')
        a(f'  v_fma_f32 {y1}, {y1}, {sGC1}, {vGC0}')
        a(f'  v_mul_f32 {y0}, {y0}, {x0}')
        a(f'  v_mul_f32 {y1}, {y1}, {x1}')
        a(f'  v_exp_f32 {y0}, {y0}')
        a(f'  v_exp_f32 {y1}, {y1}')
        a(f'  v_add_f32 {y0}, 1.0, {y0}')
        a(f'  v_add_f32 {y1}, 1.0, {y1}')
        a(f'  v_rcp_f32 {y0}, {y0}')
        a(f'  v_rcp_f32 {y1}, {y1}')
        a(f'  v_mul_f32 {y0}, {y0}, {x0}')
        a(f'  v_mul_f32 {y1}, {y1}, {x1}')
        a(f'  v_cvt_pk_bf16_f32 {pk}, {y0}, {y1}')
        a(f'  v_lshlrev_b32 {x0}, 16, {pk}')
        a(f'  v_and_b32 {x1}, 0xffff0000, {pk}')
        a(f'  v_fmac_f32 {vBacc}, s68, {x0}')
        a(f'  v_fmac_f32 {vBacc}, s69, {x1}')
    a(f'  s_add_u32 {sBo}, {sBo}, 16')
    a(f'  s_add_u32 {sCnt}, {sCnt}, 1')
    a(f'  s_cmp_lt_u32 {sCnt}, {sLim}')
    a('  s_cbranch_scc1 L_bloop')
    a(f'  s_cmp_eq_u32 {sLim}, 48')
    a('  s_cbranch_scc1 L_bdone')
    a('  v_and_b32 v34, 31, v0')
    a('  v_lshlrev_b32 v34, 5, v34')
    a('  v_lshrrev_b32 v35, 5, v0')
    a('  v_lshl_add_u32 v34, v35, 11, v34')
    a(f'  s_lshl_b32 {sT0}, {sHKV}, 15')
    a(f'  s_lshl_b32 {sT1}, {sB}, 10')
    a(f'  s_add_u32 {sT0}, {sT0}, {sT1}')
    a(f'  s_add_u32 {sT0}, {sT0}, {QBOX}')
    a(f'  s_mov_b32 {sSpin}, 0')
    stamp('q0')
    a('L_pollq:')
    a(f'  s_mov_b32 {sT1}, {sT0}')
    for k in range(8):
        a(f'  buffer_load_dwordx4 {vr(GQ+8*k)}, v34, {WS_}, {sT1} offen sc1')
        a(f'  buffer_load_dwordx4 {vr(GQ+8*k+4)}, v34, {WS_}, {sT1} offen offset:16 sc1')
        if k < 7:
            a(f'  s_add_u32 {sT1}, {sT1}, 4096')
    a('  s_waitcnt vmcnt(0)')
    tagcheck(GQ, 16, 'L_gotq', 'L_pollq', 16)
    a('L_gotq:')
    for k in range(1, 8):
        for r in range(4):
            a(f'  v_add_f32 v{GQ+2*r}, v{GQ+2*r}, v{GQ+8*k+2*r}')
    a(f'  v_cvt_pk_bf16_f32 v16, v{GQ}, v{GQ+2}')
    a(f'  v_cvt_pk_bf16_f32 v17, v{GQ+4}, v{GQ+6}')
    a('  v_lshlrev_b32 v34, 3, v0')
    a(f'  ds_write_b64 v34, v[16:17] offset:{L_Q}')
    a('  v_mov_b32 v35, 1')
    a(f'  ds_write_b32 {vCtl}, {vTagV} offset:{L_TAG-L_CNT}')
    a('  s_waitcnt lgkmcnt(0)')
    a(f'  ds_write_b32 {vCtl}, v35 offset:{L_FLAG-L_CNT}')
    stamp('qready')
    a('  s_setprio 0')
    a(f'  s_mov_b32 {sLim}, 48')
    a('  s_branch L_bloop')
    a('L_bdone:')
    a(f'  s_lshl_b32 {sT1}, {sL}, 12')
    a(f'  s_add_u32 {sT1}, {sT1}, {BLK}')
    a(f'  s_cmp_ge_u32 {sIdx}, 108')
    a('  s_cbranch_scc1 L_nobst')
    a(f'  v_mov_b32 v42, {vBacc}')
    a(f'  v_mov_b32 v43, {vTagV}')
    a('  v_lshlrev_b32 v34, 3, v0')
    a(f'  buffer_store_dwordx2 v[42:43], v34, {WS_}, {sT1} offen offset:{B_B} sc1')
    a('L_nobst:')
    a(f'  s_cmp_lg_u32 {sC}, 0')
    a('  s_cbranch_scc1 L_noctr')
    a('  v_mov_b32 v44, 0')
    a(f'  v_mov_b32 v45, {vTagV}')
    a('  s_mov_b64 exec, 1')
    a(f'  buffer_store_dwordx2 v[44:45], off, {WS_}, {sT1} offset:{B_CTR} sc1')
    a('  s_mov_b64 exec, -1')
    a('L_noctr:')
    stamp('bdone')
    def wait_cnt(lbl, val, sl):
        a(f'{lbl}:')
        a(f'  ds_read_b32 v35, {vCtl}')
        a(f'  s_sleep {sl}')
        a('  s_waitcnt lgkmcnt(0)')
        a(f'  v_readfirstlane_b32 {sT0}, v35')
        a(f'  s_cmp_lt_u32 {sT0}, {val}')
        a(f'  s_cbranch_scc1 {lbl}')
    a(f'  s_lshl_b32 {sT0}, {sC}, 1')
    a(f'  s_add_u32 {sT0}, {sT0}, {sB}')
    a(f'  s_cmp_lg_u32 {sT0}, {sHKV}')
    a('  s_cbranch_scc1 L_tickets')
    wait_cnt('L_bgwait', BG << 11, 32)
    a(f'  s_mul_i32 {sT0}, {sC}, 72')
    a(f'  v_lshl_add_u32 v34, v0, 1, {sT0}')
    a('  v_lshrrev_b32 v42, 6, v34')
    a('  v_lshlrev_b32 v42, 12, v42')
    a('  v_and_b32 v43, 63, v34')
    a('  v_lshl_add_u32 v42, v43, 3, v42')
    a('  v_lshlrev_b32 v51, 1, v34')
    a(f'  s_mul_i32 {sT1}, {sB}, 1152')
    a(f'  v_add_u32 v51, {sT1}, v51')
    a(f'  s_lshl_b32 {sT0}, {sB}, 19')
    a(f'  s_add_u32 {sT0}, {sT0}, {BLK}')
    a('  s_mov_b32 exec_hi, 0xf')
    a(f'  buffer_load_dword v50, v51, {X_}, 0 offen')
    a(f'  s_mov_b32 {sSpin}, 0')
    a('L_pollb:')
    a(f'  s_mov_b32 {sT1}, {sT0}')
    for k in range(12):
        a(f'  buffer_load_dwordx4 {vr(GQ+4*k)}, v42, {WS_}, {sT1} offen offset:{B_B} sc1')
        if k < 11:
            a(f'  s_add_u32 {sT1}, {sT1}, {9*4096}')
    a('  s_waitcnt vmcnt(0)')
    tagcheck(GQ, 12, 'L_gotb', 'L_pollb', 64)
    a('L_gotb:')
    for k in range(1, 12):
        a(f'  v_add_f32 v{GQ}, v{GQ}, v{GQ+4*k}')
        a(f'  v_add_f32 v{GQ+2}, v{GQ+2}, v{GQ+4*k+2}')
    a(f'  s_lshl_b32 {sB2}, {sB2}, 16')
    a(f'  v_cvt_pk_bf16_f32 v34, v{GQ}, v{GQ+2}')
    a('  v_lshlrev_b32 v48, 16, v34')
    a('  v_and_b32 v49, 0xffff0000, v34')
    a(f'  v_add_f32 v48, {sB2}, v48')
    a(f'  v_add_f32 v49, {sB2}, v49')
    a('  v_cvt_pk_bf16_f32 v34, v48, v49')
    a('  v_lshlrev_b32 v48, 16, v34')
    a('  v_and_b32 v49, 0xffff0000, v34')
    a('  s_mov_b64 exec, -1')
    a('L_tickets:')
    sF, sPend, sEnd = 's36', 's37', 's38'
    sN = ['s80', 's81', 's82', 's83']
    vK = ['v52', 'v54', 'v56', 'v58']
    vKh = ['v53', 'v55', 'v57', 'v59']
    a(f'  s_and_b32 {sT0}, s2, 0xf8')
    a(f'  s_lshl_b32 s40, {sT0}, 12')
    a(f'  s_add_u32 s40, s40, {BLK}')
    a(f'  s_mov_b32 {sF}, 0')
    a(f'  s_mov_b32 {sPend}, 0')
    a(f'  s_mov_b32 {sEnd}, 0')
    a(f'  s_mov_b32 {sSpin}, 0')
    for k in range(4):
        a(f'  s_mov_b32 {sN[k]}, 0')
        a(f'  v_mov_b32 {vK[k]}, 0')
        a(f'  v_mov_b32 {vKh[k]}, 0')
    a('  v_mov_b32 v45, 0')
    a('  s_waitcnt vmcnt(0)')
    wait_cnt('L_tkwait', (NS - R - 2) << 11, 8)
    a('  s_setprio 3')
    a('L_tkloop:')
    for k in range(4):
        a('  s_waitcnt vmcnt(3)')
        a(f'  ds_read_b32 v35, {vCtl}')
        a(f'  v_readfirstlane_b32 {sT0}, {vK[k]}')
        a(f'  v_readfirstlane_b32 {sT1}, {vKh[k]}')
        a(f'  s_sub_u32 {sPend}, {sPend}, {sN[k]}')
        a(f'  s_cmp_eq_u32 {sT1}, {sTag}')
        a(f'  s_cselect_b32 {sN[k]}, {sN[k]}, 0')
        a(f'  s_cmp_eq_u32 {sN[k]}, 0')
        a(f'  s_cbranch_scc1 L_tkn{k}')
        a(f'  s_cmp_lt_u32 {sT0}, {8*P - DK}')
        a(f'  s_cbranch_scc1 L_tkf{k}')
        a(f'  ds_write_b32 {vCtl}, v45 offset:{L_FIN-L_CNT}')
        a(f'L_tkf{k}:')
        a(f'  s_add_u32 {sT1}, {sT0}, {sN[k]}')
        a(f'  s_min_u32 {sT1}, {sT1}, {8*P}')
        a(f'  s_min_u32 s41, {sT0}, {8*P}')
        a(f'  s_sub_u32 s41, {sT1}, s41')
        a(f'  s_cmp_ge_u32 {sT1}, {8*P}')
        a(f'  s_cselect_b32 {sEnd}, 1, {sEnd}')
        a('  s_cmp_eq_u32 s41, 0')
        a(f'  s_cbranch_scc1 L_tkn{k}')
        a(f'  v_add_u32 v42, {sT0}, v0')
        a('  v_lshrrev_b32 v43, 3, v42')
        a(f'  v_add_u32 v43, {NS}, v43')
        a('  v_lshlrev_b32 v43, 11, v43')
        a('  v_and_b32 v44, 0xffff8000, v43')
        a('  v_add_u32 v43, v43, v44')
        a(f'  v_xor_b32 v43, {sMask}, v43')
        a('  v_and_b32 v42, 7, v42')
        a('  v_lshl_add_u32 v43, v42, 20, v43')
        a(f'  v_add_u32 v44, {sF}, v0')
        a('  v_lshlrev_b32 v44, 2, v44')
        a('  s_bfm_b64 exec, s41, 0')
        a(f'  ds_write_b32 v44, v43 offset:{L_POOL}')
        a('  s_mov_b64 exec, -1')
        a(f'  s_add_u32 {sF}, {sF}, s41')
        a(f'L_tkn{k}:')
        a(f'  s_cmp_eq_u32 {sEnd}, 1')
        a(f'  s_cselect_b32 {sT1}, {sPend}, 1')
        a(f'  s_cmp_eq_u32 {sT1}, 0')
        a('  s_cbranch_scc1 L_tkend')
        a('  s_waitcnt lgkmcnt(0)')
        a(f'  v_readfirstlane_b32 {sT0}, v35')
        a(f'  s_lshr_b32 {sT0}, {sT0}, 11')
        a(f'  s_sub_u32 {sT0}, {sT0}, {NS - R}')
        a(f'  s_sub_u32 {sT0}, {sT0}, {sF}')
        a(f'  s_sub_u32 {sT0}, {sT0}, {sPend}')
        a(f'  s_max_i32 {sT0}, {sT0}, 0')
        a(f'  s_min_i32 {sT0}, {sT0}, {G}')
        a(f'  s_cmp_eq_u32 {sEnd}, 1')
        a(f'  s_cselect_b32 {sN[k]}, 0, {sT0}')
        a(f'  s_add_u32 {sPend}, {sPend}, {sN[k]}')
        a(f'  v_mov_b32 {vK[k]}, {sN[k]}')
        a(f'  v_mov_b32 {vKh[k]}, 0')
        a(f'  s_cmp_eq_u32 {sN[k]}, 0')
        a(f'  s_cselect_b32 {sT1}, {INVALID}, s40')
        a('  s_mov_b64 exec, 1')
        a(f'  buffer_atomic_add_x2 v[{52+2*k}:{53+2*k}], off, {WS_}, {sT1} offset:{B_CTR} sc0')
        a('  s_mov_b64 exec, -1')
        a('  s_sleep 2')
    a(f'  s_add_u32 {sSpin}, {sSpin}, 1')
    a(f'  s_cmp_lt_u32 {sSpin}, 0x8000')
    a('  s_cbranch_scc1 L_tkloop')
    a('L_tkend:')
    a(f'  ds_write_b32 {vCtl}, v45 offset:{L_FIN-L_CNT}')
    a(f'  v_add_u32 v44, {sF}, v0')
    a('  v_lshlrev_b32 v44, 2, v44')
    a(f'  v_mov_b32 v43, {INVALID}')
    a(f'  ds_write_b32 v44, v43 offset:{L_POOL}')
    stamp('poolend')
    a('  s_waitcnt vmcnt(0) lgkmcnt(0)')
    E, WOF = 64, 128
    a('  v_lshrrev_b32 v24, 5, v0')
    a('  v_lshlrev_b32 v24, 6, v24')
    a('  v_lshlrev_b32 v25, 5, v0')
    for r in (29, 31, 33, 35, 37, 39):
        a(f'  v_mov_b32 v{r}, {vTagV}')
    a(f'  s_lshl_b32 {sT1}, {sL}, 12')
    a(f'  s_add_u32 {sT1}, {sT1}, {BLK}')
    a(f'  s_lshl_b32 s41, {sL}, 5')
    a(f'  s_add_u32 s41, s41, {GML}')
    a('L_dwait:')
    a(f'  ds_read_b32 v26, {vCtl} offset:{L_DONE-L_CNT}')
    a('  s_waitcnt lgkmcnt(0)')
    a(f'  v_readfirstlane_b32 {sT0}, v26')
    a(f'  s_cmp_lt_u32 {sT0}, 7')
    a('  s_cbranch_scc1 L_dwait')
    ML = E + 32
    for k in range(4):
        a(f'  ds_read_b128 {vr(ML+4*k)}, v24 offset:{L_ML+16*k}')
    for k in range(1, 8):
        a(f'  ds_read_b128 {vr(E+4*k)}, {vL16} offset:{L_OP+1024*k}')
    a('  s_waitcnt lgkmcnt(7)')
    a(f'  v_max3_f32 v36, v{ML+2}, v{ML+4}, v{ML+6}')
    a(f'  v_max3_f32 v36, v36, v{ML+8}, v{ML+10}')
    a(f'  v_max3_f32 v36, v36, v{ML+12}, v{ML+14}')
    a(f'  v_mul_f32 v26, {sNLog2e}, v36')
    for k in range(1, 8):
        a(f'  v_fma_f32 v{ML+2*k}, v{ML+2*k}, {sLog2e}, v26')
    for k in range(1, 8):
        a(f'  v_exp_f32 v{ML+2*k}, v{ML+2*k}')
    a(f'  v_mul_f32 v38, v{ML+2}, v{ML+3}')
    for k in range(2, 8):
        a(f'  v_fmac_f32 v38, v{ML+2*k}, v{ML+2*k+1}')
    a('  s_waitcnt lgkmcnt(0)')
    for r in range(4):
        a(f'  v_mul_f32 v{28+2*r}, v{ML+2}, v{E+4+r}')
    for k in range(2, 8):
        for r in range(4):
            a(f'  v_fmac_f32 v{28+2*r}, v{ML+2*k}, v{E+4*k+r}')
    a(f'  buffer_store_dwordx4 v[28:31], v25, {WS_}, {sT1} offen sc1')
    a(f'  buffer_store_dwordx4 v[32:35], v25, {WS_}, {sT1} offen offset:16 sc1')
    a('  v_lshrrev_b32 v24, 2, v24')
    a('  s_mov_b32 exec_lo, 1')
    a('  s_mov_b32 exec_hi, 1')
    a(f'  buffer_store_dwordx4 v[36:39], v24, {WS_}, s41 offen sc1')
    a('  s_mov_b64 exec, -1')
    stamp('pub1')
    a('  s_branch L_tail')

    a('.p2align 6')
    a('L_done:')
    stamp('loopend')
    tmp = f'v{T}'
    for p in ['v_permlane32_swap_b32', 'v_permlane16_swap_b32']:
        a(f'  v_mov_b32 {tmp}, {vLs}')
        a('  s_nop 1')
        a(f'  {p} {tmp}, {vLs}')
        a(f'  v_add_f32 {vLs}, {vLs}, {tmp}')
    a('  v_and_b32 v24, 15, v0')
    a('  v_lshlrev_b32 v24, 5, v24')
    a('  v_bfe_u32 v25, v0, 4, 1')
    a('  v_lshl_add_u32 v24, v25, 4, v24')
    a('  v_lshrrev_b32 v25, 5, v0')
    a('  v_lshl_add_u32 v24, v25, 9, v24')
    a(f'  s_lshl_b32 {sT0}, {sW}, 10')
    a(f'  v_add_u32 v24, {sT0}, v24')
    a(f'  ds_write_b128 v24, {vr(O)} offset:{L_OP}')
    a('  v_bfe_u32 v24, v0, 3, 1')
    a('  v_lshlrev_b32 v24, 6, v24')
    a(f'  s_lshl_b32 {sT0}, {sW}, 3')
    a(f'  v_add_u32 v24, {sT0}, v24')
    a(f'  v_mov_b32 v26, {vM}')
    a(f'  v_mov_b32 v27, {vLs}')
    a('  v_mov_b32 v28, 1')
    a('  s_mov_b64 exec, 0x101')
    a(f'  ds_write_b64 v24, v[26:27] offset:{L_ML}')
    a('  s_mov_b64 exec, 1')
    a('  s_waitcnt lgkmcnt(0)')
    a(f'  ds_add_u32 {vCtl}, v28 offset:{L_DONE-L_CNT}')
    a('  s_mov_b64 exec, -1')
    a(f'  s_cmp_lg_u32 {sW}, 3')
    a('  s_cbranch_scc1 L_nodma')
    a('  v_mul_u32_u24 v34, 57, v0')
    a('  v_lshrrev_b32 v34, 9, v34')
    a('  v_mul_u32_u24 v35, 9, v34')
    a('  v_sub_u32 v35, v0, v35')
    a('  v_lshlrev_b32 v35, 4, v35')
    a('  v_mul_u32_u24 v34, 1152, v34')
    a('  v_add_u32 v34, v34, v35')
    a(f'  s_mul_i32 s64, {sHKV}, {256*1152}')
    a(f'  s_mul_i32 {sT1}, {sC}, 144')
    a(f'  s_add_u32 s64, s64, {sT1}')
    a(f'  s_mov_b32 s65, {L_WO}')
    a('  s_waitcnt vmcnt(0)')
    a('L_fwait:')
    a(f'  ds_read_b64 v[36:37], {vCtl}')
    a('  s_sleep 4')
    a('  s_waitcnt lgkmcnt(0)')
    a(f'  v_readfirstlane_b32 {sT0}, v36')
    a(f'  v_readfirstlane_b32 {sT1}, v37')
    a(f'  s_cmp_lt_u32 {sT0}, {sT1}')
    a('  s_cbranch_scc1 L_fwait')
    stamp('dma0')
    a('L_dmaloop:')
    a('  s_mov_b32 m0, s65')
    a('  s_add_u32 s65, s65, 1008')
    a(f'  buffer_load_dwordx4 v34, {WO_}, s64 offen nt lds')
    a(f'  s_add_u32 s64, s64, {7*1152}')
    a(f'  s_cmp_lt_u32 s65, {L_WO + 37*1008}')
    a('  s_cbranch_scc1 L_dmaloop')
    a('  s_branch L_tail')
    a('L_nodma:')
    a('  s_waitcnt vmcnt(0)')

    a('L_tail:')
    if 'notail' in exp:
        a('  s_branch L_fin')
    a(f'  s_lshl_b32 {sT1}, {sL}, 12')
    a(f'  s_add_u32 {sT1}, {sT1}, {BLK}')
    a('  v_lshrrev_b32 v24, 4, v0')
    a('  v_mul_u32_u24 v24, 1152, v24')
    a('  v_bfe_u32 v25, v0, 2, 2')
    a('  v_mul_u32_u24 v25, 144, v25')
    a('  v_and_b32 v26, 3, v0')
    a('  v_lshlrev_b32 v26, 3, v26')
    a('  v_add3_u32 v24, v24, v25, v26')
    a(f'  s_mul_i32 {sT0}, {sW}, 4608')
    a(f'  v_add_u32 v24, {sT0}, v24')
    a('  v_and_b32 v25, 7, v0')
    a('  v_lshlrev_b32 v27, 12, v25')
    a('  v_lshlrev_b32 v25, 5, v25')
    a('  v_lshrrev_b32 v26, 3, v0')
    a('  v_lshl_add_u32 v26, v26, 5, v27')
    a(f'  s_and_b32 {sT0}, {sT1}, 0xffff8000')
    a(f'  s_lshl_b32 s64, {sW}, 8')
    a(f'  s_add_u32 s64, s64, {sT0}')
    a(f'  s_and_b32 s65, {sL}, 0xf8')
    a('  s_lshl_b32 s65, s65, 5')
    a(f'  s_add_u32 s65, s65, {GML}')
    a(f'  s_lshr_b32 {sT0}, {sW}, 2')
    a(f'  s_lshl_b32 {sT0}, {sT0}, 4')
    a(f'  s_add_u32 s65, s65, {sT0}')
    a(f'  s_mov_b32 {sSpin}, 0')
    a(f'  s_mul_i32 {sT0}, {sW}, 320')
    a('  v_lshlrev_b32 v44, 2, v0')
    a(f'  v_add_u32 v44, {sT0}, v44')
    a('  s_barrier')
    stamp('barx')
    def p1loads():
        a(f'  buffer_load_dwordx4 {vr(E)}, v26, {WS_}, s64 offen sc1')
        a(f'  buffer_load_dwordx4 {vr(E+4)}, v26, {WS_}, s64 offen offset:16 sc1')
        a(f'  buffer_load_dwordx4 {vr(E+8)}, v25, {WS_}, s65 offen sc1')
    p1loads()
    a('  s_waitcnt vmcnt(3)')
    a('  s_barrier')
    stamp('dma1')
    for ct in range(5):
        a(f'  ds_read_b64_tr_b16 {vr(WOF+4*ct,2)}, v24 offset:{L_WO+ct*32}')
        a(f'  ds_read_b64_tr_b16 {vr(WOF+4*ct+2,2)}, v24 offset:{L_WO+ct*32+4*144}')
    a('  s_branch L_chk1')
    a('L_poll1:')
    p1loads()
    a('L_chk1:')
    a('  s_waitcnt vmcnt(0)')
    tagcheck(E, 3, 'L_got1', 'L_poll1', SL1, shrink=True)
    a('L_got1:')
    a('  s_mov_b64 exec, -1')
    stamp('hop1')
    R8 = ['quad_perm:[1,0,3,2]', 'quad_perm:[2,3,0,1]', 'row_half_mirror']
    vm, vl = f'v{E+8}', f'v{E+10}'
    od = [f'v{E+2*r}' for r in range(4)]
    a(f'  v_mov_b32 v34, {vm}')
    for m in R8:
        a('  s_nop 1')
        a(f'  v_max_f32_dpp v34, v34, v34 {m}{DPPM}')
    a(f'  v_sub_f32 {vm}, {vm}, v34')
    a(f'  v_mul_f32 {vm}, {sLog2e}, {vm}')
    a(f'  v_exp_f32 {vm}, {vm}')
    a('  s_nop 0')
    a(f'  v_mul_f32 {vl}, {vl}, {vm}')
    for r in range(4):
        a(f'  v_mul_f32 {od[r]}, {od[r]}, {vm}')
    for m in R8:
        a(f'  v_add_f32_dpp {vl}, {vl}, {vl} {m}{DPPM}')
        for r in range(4):
            a(f'  v_add_f32_dpp {od[r]}, {od[r]}, {od[r]} {m}{DPPM}')
    a(f'  v_rcp_f32 {vl}, {vl}')
    a('  s_nop 0')
    for r in range(4):
        a(f'  v_mul_f32 {od[r]}, {od[r]}, {vl}')
    a(f'  v_cvt_pk_bf16_f32 v40, {od[0]}, {od[1]}')
    a(f'  v_cvt_pk_bf16_f32 v41, {od[2]}, {od[3]}')
    a('  s_nop 1')
    a(f'  v_mov_b32_dpp v42, v40 row_ror:8{DPPM}')
    a(f'  v_mov_b32_dpp v43, v41 row_ror:8{DPPM}')
    a('  s_waitcnt lgkmcnt(0)')
    a('  s_nop 0')
    for ct in range(5):
        a(f'  v_mfma_f32_16x16x32_bf16 {vr(E+16+4*ct)}, v[40:43], {vr(WOF+4*ct)}, 0')
    a('  s_mov_b64 exec, 0xffff')
    a('  s_nop 7')
    for ct in range(5):
        a(f'  ds_write_b32 v44, v{E+16+4*ct} offset:{L_Y+64*ct}')
    a('  s_mov_b64 exec, -1')
    a('  s_waitcnt lgkmcnt(0)')
    a('  s_barrier')
    a(f'  s_cmp_lg_u32 {sW}, 0')
    a('  s_cbranch_scc1 L_fin')
    a('  v_lshlrev_b32 v24, 3, v0')
    a('  s_mov_b32 exec_hi, 0xf')
    for k in range(8):
        a(f'  ds_read_b64 {vr(E+2*k,2)}, v24 offset:{L_Y+320*k}')
    a(f'  v_mov_b32 v29, {vTagV}')
    a(f'  v_mov_b32 v31, {vTagV}')
    a('  s_waitcnt lgkmcnt(6)')
    a(f'  v_add_f32 v28, v{E}, v{E+2}')
    a(f'  v_add_f32 v30, v{E+1}, v{E+3}')
    for k in range(2, 8):
        a(f'  s_waitcnt lgkmcnt({7-k})')
        a(f'  v_add_f32 v28, v28, v{E+2*k}')
        a(f'  v_add_f32 v30, v30, v{E+2*k+1}')
    a(f'  buffer_store_dwordx4 v[28:31], {vL16}, {WS_}, {sT1} offen offset:{B_Y} sc1')
    stamp('pub2')
    a(f'  s_lshl_b32 {sT0}, {sC}, 1')
    a(f'  s_add_u32 {sT0}, {sT0}, {sB}')
    a(f'  s_cmp_lg_u32 {sT0}, {sHKV}')
    a('  s_cbranch_scc1 L_fin')
    srd(60, 's24', 's25', 2304)
    a(f'  s_mul_i32 {sT0}, {sC}, 144')
    a(f'  s_mul_i32 {sT1}, {sB}, 1152')
    a(f'  s_add_u32 {sT0}, {sT0}, {sT1}')
    a(f'  v_lshl_add_u32 v51, v0, 2, {sT0}')
    a(f'  s_lshl_b32 {sT0}, {sB}, 7')
    a(f'  s_add_u32 {sT0}, {sT0}, {sC}')
    a(f'  s_lshl_b32 {sT0}, {sT0}, 12')
    a(f'  s_add_u32 {sT0}, {sT0}, {BLK}')
    a(f'  s_mov_b32 {sSpin}, 0')
    a('L_poll2:')
    a(f'  s_mov_b32 {sT1}, {sT0}')
    for k in range(16):
        a(f'  buffer_load_dwordx4 {vr(E+4*k)}, {vL16}, {WS_}, {sT1} offen offset:{B_Y} sc1')
        if k < 15:
            a(f'  s_add_u32 {sT1}, {sT1}, 0x8000')
    a('  s_waitcnt vmcnt(0)')
    tagcheck(E, 16, 'L_got2', 'L_poll2', SL2)
    a('L_got2:')
    for k in range(1, 16):
        a(f'  v_add_f32 v{E}, v{E}, v{E+4*k}')
        a(f'  v_add_f32 v{E+2}, v{E+2}, v{E+4*k+2}')
    a(f'  v_cvt_pk_bf16_f32 v30, v{E}, v{E+2}')
    a('  v_lshlrev_b32 v28, 16, v30')
    a('  v_and_b32 v29, 0xffff0000, v30')
    a('  v_lshlrev_b32 v32, 16, v50')
    a('  v_and_b32 v33, 0xffff0000, v50')
    a('  v_add_f32 v28, v28, v32')
    a('  v_add_f32 v29, v29, v33')
    a('  v_cvt_pk_bf16_f32 v30, v28, v29')
    a('  v_lshlrev_b32 v28, 16, v30')
    a('  v_and_b32 v29, 0xffff0000, v30')
    a('  v_add_f32 v28, v28, v48')
    a('  v_add_f32 v29, v29, v49')
    a('  v_cvt_pk_bf16_f32 v30, v28, v29')
    a(f'  buffer_store_dword v30, v51, {OUT_}, 0 offen')
    a(f'  s_cmp_lg_u32 {sL}, 0')
    a('  s_cbranch_scc1 L_fin')
    a('  s_mov_b64 exec, 1')
    a(f'  s_mov_b32 {sT0}, {EP2}')
    a(f'  buffer_store_dword {vTagV}, off, {WS_}, 0')
    a(f'  buffer_store_dword {vTagV}, off, {WS_}, {sT0}')
    a('L_fin:')
    if ts and 'dbgts' in exp:
        a(f'  s_cmp_gt_u32 {sW}, 4')
        a('  s_cbranch_scc1 L_end')
        a('  s_and_b32 s64, s2, 15')
        a(f'  s_cmp_lg_u32 s64, 0')
        a('  s_cbranch_scc1 L_end')
    if ts:
        a('  s_waitcnt vmcnt(0)')
        a('  s_memrealtime s[64:65]')
        a('  s_waitcnt lgkmcnt(0)')
        for i in range(8):
            a(f'  v_mov_b32 v{24+i}, s{sTs+i}')
        a('  v_mov_b32 v32, s64')
        a('  v_mov_b32 v33, s65')
        a('  s_lshl_b32 s66, s2, 3')
        a(f'  s_add_u32 s66, s66, {sW}')
        a('  s_lshl_b32 s66, s66, 6')
        a(f'  s_add_u32 s66, s66, {TS_OFF}')
        a('  v_mov_b32 v1, s66')
        a('  s_mov_b64 exec, 1')
        a('  global_store_dwordx4 v1, v[24:27], s[28:29]')
        a('  global_store_dwordx4 v1, v[28:31], s[28:29] offset:16')
        a('  global_store_dwordx2 v1, v[32:33], s[28:29] offset:32')
    if ts and 'dbgts' in exp:
        a('  s_mov_b64 exec, 1')
        a('  v_mov_b32 v1, 0')
        for i, r in enumerate([24, 26, 28, 30, 32]):
            a(f'  v_cmp_ne_u32 vcc, 0, v{r}')
            a(f'  v_not_b32 v40, v{r}')
            a('  s_nop 1')
            a('  v_cndmask_b32 v40, 0, v40, vcc')
            a(f'  global_atomic_umax v1, v{r}, s[26:27] offset:{8*i}')
            a(f'  global_atomic_umax v1, v40, s[26:27] offset:{8*i+4}')
            a('  s_waitcnt vmcnt(0)')
    a('L_end:')
    a('  s_endpgm')
    body = '\n'.join(o)
    txt = HEADER + f'''; @launch grid=(256,1,1) block=(512,1,1) lds={LDS_BYTES}
.amdgcn_target "amdgcn-amd-amdhsa--gfx950"
.text
.globl {KNAME}
.p2align 8
.type {KNAME},@function
{body}
.section .rodata,"a"
.p2align 6
.amdhsa_kernel {KNAME}
  .amdhsa_next_free_vgpr 256
  .amdhsa_next_free_sgpr 102
  .amdhsa_accum_offset 256
  .amdhsa_group_segment_fixed_size 0
  .amdhsa_kernarg_size 104
  .amdhsa_user_sgpr_count 2
  .amdhsa_user_sgpr_kernarg_segment_ptr 1
  .amdhsa_system_sgpr_workgroup_id_x 1
  .amdhsa_float_denorm_mode_32 3
.end_amdhsa_kernel
'''
    return txt

if __name__ == '__main__':
    out = sys.argv[1]
    ts = 'ts' in sys.argv[2:]
    kw = {}
    for x in sys.argv[2:]:
        if x.startswith('ev='):
            ts = {n: i for i, n in enumerate(x[3:].split(','))}
        elif '=' in x:
            k, v = x.split('='); kw[k] = int(v)
    open(out, 'w').write(gen(ts=ts, exp=sys.argv[2:], **kw))
    print('lds', LDS_BYTES)
```

```python
import sys, struct, math

NAME = 'parallel_sum__gqa_block_cached__mixer_token_mlp__decode'
KNAME = NAME + '_kernel'

def f32(x):
    return '0x%08x' % struct.unpack('<I', struct.pack('<f', x))[0]

LOG2E = 1.4426950408889634
SCALE = 128 ** -0.5
K0 = math.sqrt(2.0 / math.pi)
GC0 = -2.0 * LOG2E * K0
GC1 = GC0 * 0.044715

HEADER = open('cdna_kernels/%s.s.ref' % NAME).read().split('; Override launch geometry')[0]

L_Q = 0
L_CNT = 512
L_FIN = 516
L_FLAG = 520
L_DONE = 524
L_ZERO = 528
L_TAG = 532
L_ML = 1024
L_Y = 1280
L_OP = 4096
L_POOL = 12288
L_WO = 14336
LDS_BYTES = (L_WO + 37 * 1008 + 64 + 255) // 256 * 256

QBOX = 4096
BLK = 2 << 20
B_O, B_Y, B_B, B_CTR = 0, 2304, 3072, 3840
GML = BLK + 256 * 4096
EP2 = GML + 32 * 256
WS_BYTES = EP2 + 256
TS_OFF = 1 << 20
INVALID = 0x40000000

def gen(ts=False, exp=(), D=3, NSTREAM=2, THR=1, NB1=3, BG=150, P=24, R=10, G=3, DK=64, SL1=4, SL2=2, PADWG=-1, PADW=-1):
    o = []
    a = o.append
    NS = 256 - P
    DPPM = ' row_mask:0xf bank_mask:0xf'
    sW = 's3'
    sHKV, sB, sC, sL = 's30', 's31', 's32', 's2'
    sMask = 's33'
    sT0, sT1 = 's34', 's35'
    K_, V_, X_, WQ_, WO_, WS_, OUT_ = [f's[{i}:{i+3}]' for i in range(36, 64, 4)]
    def srd(base, lo, hi, nrec):
        a(f'  s_mov_b32 s{base}, {lo}')
        a(f'  s_and_b32 s{base+1}, {hi}, 0xffff')
        a(f'  s_mov_b32 s{base+2}, {nrec}')
        a(f'  s_mov_b32 s{base+3}, 0x20000')
    sOff = [f's{64+i}' for i in range(6)]
    sScale, sLog2e, sNLog2e, sGC1 = 's70', 's71', 's72', 's73'
    sSame = 's[74:75]'
    sTag, sIdx, sSpin, sB2 = 's76', 's77', 's78', 's79'
    sU = [f's{80+i}' for i in range(14)]
    sForce = 's80'
    sTs = 94
    vKoff, vVoff, vTick, vCnt = 'v1', 'v2', 'v3', 'v4'
    SEL = 5
    vM, vNegM, vLs = 'v13', 'v14', 'v15'
    O, S, AF, T, QF, RING = 16, 20, 24, 40, 48, 64
    vInc, vTagV, vL16, vCtl = 'v255', 'v254', 'v253', 'v252'
    assert D <= 5
    def vr(b, n=4): return f'v[{b}:{b+n-1}]'
    EV = {'start': 0, 'qready': 1, 'loopend': 2, 'hop1': 3}
    if isinstance(ts, dict): EV = ts
    def stamp(name):
        if ts and name in EV:
            i = EV[name]
            a(f'  s_memrealtime s[{sTs+2*i}:{sTs+2*i+1}]')
    def rnd(v):
        a(f'  v_cvt_pk_bf16_f32 {v}, {v}, {v}')
        a(f'  v_and_b32 {v}, 0xffff0000, {v}')
    def selectors(t0, t1, t2, t3):
        a(f'  v_and_b32 {t0}, 1, v0')
        a(f'  v_cmp_eq_u32 vcc, 1, {t0}')
        a(f'  v_mov_b32 {t0}, 0x0c0c0100')
        a(f'  v_mov_b32 {t1}, 0x01000c0c')
        a(f'  v_cndmask_b32 {t0}, {t0}, {t1}, vcc')
        a(f'  v_mov_b32 {t1}, 0x0c0c0302')
        a(f'  v_mov_b32 {t2}, 0x03020c0c')
        a(f'  v_cndmask_b32 {t1}, {t1}, {t2}, vcc')
        a(f'  v_bfe_u32 {t2}, v0, 1, 2')
        a(f'  v_mov_b32 {t3}, 0x0c0c0c0c')
        for d in range(4):
            a(f'  v_cmp_eq_u32 vcc, {d}, {t2}')
            a(f'  s_nop 1')
            a(f'  v_cndmask_b32 v{SEL+d}, {t3}, {t0}, vcc')
            a(f'  v_cndmask_b32 v{SEL+4+d}, {t3}, {t1}, vcc')
    def consts():
        a(f'  s_mov_b32 {sLog2e}, {f32(LOG2E)}')
        a(f'  s_mov_b32 {sNLog2e}, {f32(-LOG2E)}')
        a(f'  v_lshlrev_b32 {vL16}, 4, v0')
    def tagcheck(base, n, lbl_ok, lbl_retry, sl=1, shrink=False):
        tags = [f'v{base+2*k+1}' for k in range(2*n)]
        a(f'  v_max_u32 v35, {tags[0]}, {tags[1]}')
        a(f'  v_min_u32 v36, {tags[0]}, {tags[1]}')
        for k in range(2, 2*n, 2):
            a(f'  v_max3_u32 v35, v35, {tags[k]}, {tags[k+1]}')
            a(f'  v_min3_u32 v36, v36, {tags[k]}, {tags[k+1]}')
        a(f'  v_xor_b32 v35, v35, {vTagV}')
        a(f'  v_xor_b32 v36, v36, {vTagV}')
        a('  v_or_b32 v35, v35, v36')
        a('  v_cmp_ne_u32 vcc, 0, v35')
        a(f'  s_cbranch_vccz {lbl_ok}')
        if shrink:
            a('  s_mov_b64 exec, vcc')
        a(f'  s_sleep {sl}')
        a(f'  s_add_u32 {sSpin}, {sSpin}, 1')
        a(f'  s_cmp_lt_u32 {sSpin}, 0x8000')
        a(f'  s_cbranch_scc1 {lbl_retry}')

    a(f'{KNAME}:')
    a('  s_cmp_ge_u32 s2, 256')
    a('  s_cbranch_scc1 L_end')
    a('  s_load_dwordx16 s[4:19], s[0:1], 0')
    a('  s_load_dwordx8 s[20:27], s[0:1], 64')
    a('  s_load_dwordx2 s[28:29], s[0:1], 96')
    if ts:
        for i in range(8):
            a(f'  s_mov_b32 s{sTs+i}, 0')
    stamp('start')
    a('  v_lshrrev_b32 v1, 6, v0')
    a('  v_and_b32 v0, 63, v0')
    a(f'  v_readfirstlane_b32 {sW}, v1')
    a(f'  s_bfe_u32 {sHKV}, s2, 0x40003')
    a(f'  s_lshr_b32 {sB}, s2, 7')
    a(f'  s_and_b32 {sC}, s2, 7')
    a(f'  s_and_b32 {sIdx}, s2, 127')
    for k, (src, dst) in enumerate([(3, 14), (4, 13), (5, 19), (6, 17), (7, 12)]):
        a(f'  s_bfe_u32 {sT0}, s2, {0x10000 | src}')
        if k == 0:
            a(f'  s_lshl_b32 {sMask}, {sT0}, {dst}')
        else:
            a(f'  s_lshl_b32 {sT0}, {sT0}, {dst}')
            a(f'  s_or_b32 {sMask}, {sMask}, {sT0}')
    a('  v_and_b32 v24, 15, v0')
    a('  v_lshrrev_b32 v25, 4, v0')
    a('  v_lshlrev_b32 v27, 4, v24')
    a(f'  v_mov_b32 {vCtl}, {L_CNT}')
    a(f'  s_cmp_eq_u32 {sW}, 0')
    a('  s_cbranch_scc1 L_helper')

    a('  v_and_b32 v26, 7, v0')
    a('  v_lshlrev_b32 v26, 8, v26')
    a('  v_lshl_add_u32 v26, v25, 4, v26')
    a('  v_bfe_u32 v28, v0, 3, 1')
    a(f'  v_lshl_add_u32 {vKoff}, v28, 15, v26')
    a('  v_bfe_u32 v28, v0, 4, 1')
    a('  v_lshl_add_u32 v26, v28, 10, v27')
    a('  v_lshrrev_b32 v28, 5, v0')
    a(f'  v_lshl_add_u32 {vVoff}, v28, 15, v26')
    a(f'  s_lshr_b32 {sT0}, s2, 3')
    a(f'  s_lshl_b32 {sT0}, {sT0}, 23')
    a('  s_mov_b32 s38, 0x800000')
    a('  s_mov_b32 s42, 0x800000')
    a('  s_mov_b32 s39, 0x20000')
    a('  s_mov_b32 s43, 0x20000')
    a(f'  s_lshl_b32 {sForce}, {sC}, 20')
    a(f'  s_or_b32 {sForce}, {sForce}, {sMask}')
    a(f'  s_sub_u32 {sU[2]}, {sW}, 1')
    a(f'  s_lshl_b32 {sU[2]}, {sU[2]}, 11')
    for d in range(D):
        a(f'  s_and_b32 {sT1}, {sU[2]}, 0xffff8000')
        a(f'  s_add_u32 {sOff[d]}, {sU[2]}, {sT1}')
        a(f'  s_xor_b32 {sOff[d]}, {sOff[d]}, {sForce}')
        if d < D - 1:
            a(f'  s_add_u32 {sU[2]}, {sU[2]}, {7<<11}')
    a('  s_waitcnt lgkmcnt(0)')
    a(f'  s_add_u32 s36, s6, {sT0}')
    a('  s_addc_u32 s37, s7, 0')
    a('  s_and_b32 s37, s37, 0xffff')
    a(f'  s_add_u32 s40, s8, {sT0}')
    a('  s_addc_u32 s41, s9, 0')
    a('  s_and_b32 s41, s41, 0xffff')
    def loadK(slot):
        for n in range(4):
            a(f'  buffer_load_dwordx4 {vr(RING+slot*32+n*4)}, {vKoff}, {K_}, {sOff[slot]} offen offset:{n*64} nt')
    def loadV(slot):
        for n in range(4):
            a(f'  buffer_load_dwordx4 {vr(RING+slot*32+16+n*4)}, {vVoff}, {V_}, {sOff[slot]} offen offset:{n*256} nt')
    a('  s_barrier')
    loadK(0)
    srd(56, 's28', 's29', WS_BYTES)
    srd(52, 's12', 's13', 4096 * 1152)
    consts()
    a(f'  s_mov_b32 {sScale}, {f32(SCALE)}')
    a('  s_mov_b32 s74, 0x00ff00ff')
    a('  s_mov_b32 s75, 0xff00ff00')
    selectors('v26', 'v27', 'v28', 'v29')
    a(f'  s_cmp_le_u32 {sW}, {NSTREAM}')
    a(f'  s_cselect_b32 {sT0}, 2048, 0')
    a(f'  s_cselect_b32 {sT1}, 0, {INVALID}')
    a(f'  s_or_b32 {sForce}, {sForce}, {sT1}')
    a(f'  v_mov_b32 {vInc}, {sT0}')
    a(f'  s_cmp_le_u32 {sW}, {NSTREAM}')
    a(f'  s_cselect_b32 {sT0}, 0, {L_ZERO-L_CNT}')
    a(f'  v_add_u32 {vCnt}, {sT0}, {vCtl}')
    a(f'  v_mov_b32 {vM}, {f32(-1e30)}')
    a(f'  v_mov_b32 {vNegM}, {f32(1e30*LOG2E)}')
    a(f'  v_mov_b32 {vLs}, 0')
    for r in range(4):
        a(f'  v_mov_b32 v{O+r}, 0')
    a('  v_bfe_u32 v26, v0, 3, 1')
    a('  v_lshlrev_b32 v26, 8, v26')
    a('  v_lshl_add_u32 v26, v25, 4, v26')
    for d in range(D):
        if d > 0:
            a(f'  s_waitcnt vmcnt({THR})')
            loadK(d)
        a(f'  s_waitcnt vmcnt({THR})')
        loadV(d)
    stamp('issued')
    a('L_qwait:')
    a(f'  ds_read_b32 v27, {vCtl} offset:{L_FLAG-L_CNT}')
    a('  s_waitcnt lgkmcnt(0)')
    a(f'  v_readfirstlane_b32 {sT0}, v27')
    a(f'  s_cmp_eq_u32 {sT0}, 1')
    a('  s_cbranch_scc1 L_qgot')
    a('  s_sleep 2')
    a('  s_branch L_qwait')
    a('L_qgot:')
    for j in range(4):
        a(f'  ds_read_b128 {vr(QF+4*j)}, v26 offset:{L_Q+64*j}')
    a(f'  ds_read_b32 {vTagV}, {vCtl} offset:{L_TAG-L_CNT}')
    a('  s_waitcnt lgkmcnt(0)')
    stamp('qready')

    rare = []
    NW = 8 * D - 4
    def tile(slot):
        kb = RING + slot * 32
        vb = kb + 16
        t = [f'v{T+i}' for i in range(4)]
        mx, tmp = f'v{T+4}', f'v{T+5}'
        pb = [f'v{T+6}', f'v{T+7}']
        a(f'  s_cmp_ge_u32 {sOff[slot]}, 0x800000')
        a('  s_cbranch_scc1 L_done')
        a(f'  s_waitcnt vmcnt({NW})')
        a('  s_mov_b64 exec, 1')
        a(f'  ds_add_rtn_u32 {vTick}, {vCnt}, {vInc}')
        a('  s_mov_b64 exec, -1')
        for j in range(4):
            c = '0' if j == 0 else vr(S)
            a(f'  v_mfma_f32_16x16x32_bf16 {vr(S)}, {vr(kb+4*j)}, {vr(QF+4*j)}, {c}')
        a('  s_waitcnt lgkmcnt(0)')
        a(f'  v_readfirstlane_b32 {sT0}, {vTick}')
        a(f'  s_cmp_ge_u32 {sT0}, {NS<<11}')
        a(f'  s_cbranch_scc1 L_pool{slot}')
        a(f'  s_and_b32 {sT1}, {sT0}, 0xffff8000')
        a(f'  s_add_u32 {sT0}, {sT0}, {sT1}')
        a(f'  s_xor_b32 {sOff[slot]}, {sT0}, {sForce}')
        a(f'L_pback{slot}:')
        loadK(slot)
        a(f'  v_cvt_pk_bf16_f32 {t[0]}, v{S}, v{S+1}')
        a(f'  v_cvt_pk_bf16_f32 {t[2]}, v{S+2}, v{S+3}')
        def unpack():
            a(f'  v_and_b32 {t[1]}, 0xffff0000, {t[0]}')
            a(f'  v_lshlrev_b32 {t[0]}, 16, {t[0]}')
            a(f'  v_and_b32 {t[3]}, 0xffff0000, {t[2]}')
            a(f'  v_lshlrev_b32 {t[2]}, 16, {t[2]}')
        unpack()
        for i in range(4):
            a(f'  v_mul_f32 {t[i]}, {sScale}, {t[i]}')
        a(f'  v_cvt_pk_bf16_f32 {t[0]}, {t[0]}, {t[1]}')
        a(f'  v_cvt_pk_bf16_f32 {t[2]}, {t[2]}, {t[3]}')
        unpack()
        a(f'  v_max3_f32 {mx}, {t[0]}, {t[1]}, {t[2]}')
        a(f'  v_max_f32 {mx}, {mx}, {t[3]}')
        a(f'  v_cmp_gt_f32 vcc, {mx}, {vM}')
        a(f'  s_cbranch_vccnz L_rare{slot}')
        a(f'L_back{slot}:')
        for i in range(4):
            a(f'  v_fma_f32 {t[i]}, {t[i]}, {sLog2e}, {vNegM}')
        for i in range(4):
            a(f'  v_exp_f32 {t[i]}, {t[i]}')
        a(f'  v_cvt_pk_bf16_f32 {pb[0]}, {t[0]}, {t[1]}')
        a(f'  v_add_f32 {tmp}, {t[0]}, {t[1]}')
        a(f'  v_cvt_pk_bf16_f32 {pb[1]}, {t[2]}, {t[3]}')
        a(f'  v_add_f32 {mx}, {t[2]}, {t[3]}')
        for r in range(4):
            for d in range(4):
                a(f'  v_perm_b32 v{AF+4*r+d}, {pb[r//2]}, {pb[r//2]}, v{SEL+(r&1)*4+d}')
        a(f'  v_add_f32 {tmp}, {tmp}, {mx}')
        a(f'  v_add_f32 {vLs}, {vLs}, {tmp}')
        a(f'  s_waitcnt vmcnt({NW})')
        for r in range(4):
            a(f'  v_mfma_f32_16x16x32_bf16 {vr(O)}, {vr(AF+4*r)}, {vr(vb+4*r)}, {vr(O)}')
        loadV(slot)
        r_ = rare.append
        r_(f'L_rare{slot}:')
        for p in ['v_permlane32_swap_b32', 'v_permlane16_swap_b32']:
            r_(f'  v_mov_b32 {tmp}, {mx}')
            r_('  s_nop 1')
            r_(f'  {p} {tmp}, {mx}')
            r_(f'  v_max_f32 {mx}, {mx}, {tmp}')
        r_(f'  v_max_f32 {mx}, {mx}, {vM}')
        r_(f'  v_sub_f32 {tmp}, {vM}, {mx}')
        r_(f'  v_mul_f32 {tmp}, {sLog2e}, {tmp}')
        r_(f'  v_exp_f32 {tmp}, {tmp}')
        r_(f'  v_mov_b32 {vM}, {mx}')
        r_(f'  v_mul_f32 {vNegM}, {sNLog2e}, {mx}')
        r_(f'  v_mul_f32 {vLs}, {vLs}, {tmp}')
        r_(f'  v_mov_b32_dpp {mx}, {tmp} row_ror:8{DPPM}')
        r_(f'  v_cndmask_b32 {mx}, {mx}, {tmp}, {sSame}')
        for r in range(4):
            r_(f'  v_mul_f32 v{O+r}, v{O+r}, {mx}')
        r_(f'  s_branch L_back{slot}')
        r_(f'L_pool{slot}:')
        r_(f'  s_sub_u32 {sT0}, {sT0}, {NS<<11}')
        r_(f'  s_lshr_b32 {sT0}, {sT0}, 9')
        r_(f'  v_mov_b32 {mx}, {sT0}')
        r_(f'L_pspin{slot}:')
        r_(f'  ds_read_b32 {vTick}, {mx} offset:{L_POOL}')
        r_('  s_waitcnt lgkmcnt(0)')
        r_(f'  v_readfirstlane_b32 {sT1}, {vTick}')
        r_(f'  s_mov_b32 {sOff[slot]}, {sT1}')
        r_(f'  s_cmp_lg_u32 {sT1}, -1')
        r_(f'  s_cbranch_scc1 L_pback{slot}')
        r_('  s_sleep 1')
        r_(f'  s_branch L_pspin{slot}')
    a('.p2align 6')
    a('L_loop:')
    for d in range(D):
        tile(d)
    a('  s_branch L_loop')
    o += rare

    a('.p2align 6')
    a('L_helper:')
    a('  s_setprio 3')
    XA, XB, XF, WQ, GQ = 64, 74, 84, 104, 176
    vXC = 'v73'
    a('  v_bfe_u32 v26, v0, 3, 1')
    a('  v_mul_u32_u24 v26, 1152, v26')
    a('  v_and_b32 v28, 7, v0')
    a('  v_lshl_add_u32 v28, v25, 3, v28')
    a('  v_mad_u32_u24 v28, v28, 36, v26')
    a('  v_mad_u32_u24 v29, v25, 36, v26')
    a('  v_mul_u32_u24 v30, 0x24000, v25')
    a('  v_add_u32 v30, v30, v27')
    a('  v_lshlrev_b32 v31, 1, v0')
    a(f'  v_mov_b32 v32, {(7*D)<<11}')
    a('  v_mov_b32 v33, -1')
    a('  v_mov_b32 v34, 0')
    a('  v_mov_b32 v35, 0')
    a(f'  ds_write_b128 {vCtl}, v[32:35]')
    a(f'  ds_write_b32 {vCtl}, v34 offset:{L_ZERO-L_CNT}')
    sRG, sCG, sI16 = sU[0], sU[1], sU[2]
    a(f'  s_lshl_b32 {sI16}, {sB}, 3')
    a(f'  s_or_b32 {sI16}, {sI16}, {sC}')
    a(f'  s_lshr_b32 {sRG}, {sI16}, 1')
    a(f'  s_and_b32 {sCG}, {sI16}, 1')
    a(f'  s_mul_i32 {sT1}, {sRG}, 144')
    a(f'  s_mul_i32 {sT0}, {sRG}, {72*8192}')
    a(f'  s_lshl_b32 {sU[3]}, {sHKV}, 9')
    a(f'  s_add_u32 {sT0}, {sT0}, {sU[3]}')
    a(f'  s_lshl_b32 {sU[3]}, {sCG}, 8')
    a(f'  s_add_u32 {sT0}, {sT0}, {sU[3]}')
    a('  s_mov_b32 s46, 2304')
    a('  s_mov_b32 s47, 0x20000')
    a(f'  s_mov_b32 s50, {576*8192}')
    a('  s_mov_b32 s51, 0x20000')
    a(f'  s_mov_b32 s58, {WS_BYTES}')
    a('  s_mov_b32 s59, 0x20000')
    a('  s_waitcnt lgkmcnt(0)')
    a('  s_mov_b32 s44, s4')
    a('  s_and_b32 s45, s5, 0xffff')
    a('  s_mov_b32 s48, s10')
    a('  s_and_b32 s49, s11, 0xffff')
    a('  s_mov_b32 s56, s28')
    a('  s_and_b32 s57, s29, 0xffff')
    a(f'  buffer_load_dwordx4 {vr(XA)}, v28, {X_}, 0 offen')
    a(f'  buffer_load_dwordx4 {vr(XA+4)}, v28, {X_}, 0 offen offset:16')
    a(f'  buffer_load_dword v{XA+8}, v28, {X_}, 0 offen offset:32')
    a(f'  buffer_load_dwordx4 {vr(XB)}, v29, {X_}, {sT1} offen')
    a(f'  buffer_load_dwordx4 {vr(XB+4)}, v29, {X_}, {sT1} offen offset:16')
    a(f'  buffer_load_dword v{XB+8}, v29, {X_}, {sT1} offen offset:32')
    for n in range(18):
        a(f'  buffer_load_dwordx4 {vr(WQ+4*n)}, v30, {WQ_}, {sT0} offen nt')
        if n < 17:
            a(f'  s_add_u32 {sT0}, {sT0}, 8192')
    a('  s_barrier')
    a(f'  s_load_dword {sTag}, s[28:29], 0')
    a(f'  s_add_u32 {sU[4]}, s28, {EP2}')
    a(f'  s_addc_u32 {sU[5]}, s29, 0')
    a(f'  s_load_dword {sSpin}, s[84:85], 0')
    a(f'  s_load_dword {sB2}, s[22:23], 0')
    sFG, sOS = sU[6], sU[7]
    a(f'  s_mul_i32 {sFG}, {sIdx}, 57')
    a(f'  s_lshr_b32 {sFG}, {sFG}, 9')
    a(f'  s_mul_i32 {sT0}, {sFG}, 9')
    a(f'  s_sub_u32 {sOS}, {sIdx}, {sT0}')
    a(f'  s_min_u32 {sFG}, {sFG}, 11')
    a(f'  s_mul_i32 {sT0}, {sB}, 1152')
    a(f'  s_lshl_b32 {sT1}, {sOS}, 7')
    a(f'  s_add_u32 {sT0}, {sT0}, {sT1}')
    a(f'  buffer_load_ushort {vXC}, v31, {X_}, {sT0} offen')
    stamp('issued')
    consts()
    srd(52, 's12', 's13', 4096 * 1152)
    a(f'  s_mov_b32 {sGC1}, {f32(GC1)}')
    selectors('v26', 'v27', 'v28', 'v29')
    a('  v_mov_b32 v32, -1')
    a('  v_mov_b32 v34, -1')
    a('  v_mov_b32 v35, -1')
    a(f'  ds_write_b128 {vL16}, v[32:35] offset:{L_POOL}')
    a(f'  ds_write_b128 {vL16}, v[32:35] offset:{L_POOL+1024}')
    def half_sum(v, t):
        for m in ['quad_perm:[1,0,3,2]', 'quad_perm:[2,3,0,1]', 'row_half_mirror']:
            a('  s_nop 1')
            a(f'  v_add_f32_dpp {v}, {v}, {v} {m}{DPPM}')
        for p in ['v_permlane16_swap_b32', 'v_permlane32_swap_b32']:
            a(f'  v_mov_b32 {t}, {v}')
            a('  s_nop 1')
            a(f'  {p} {t}, {v}')
            a(f'  v_add_f32 {v}, {v}, {t}')
    def ln_stats(mu, rd, t0, t1, t2):
        a(f'  v_add_f32 {t0}, v{XF}, v{XF+1}')
        a(f'  v_add_f32 {t1}, v{XF+2}, v{XF+3}')
        for k in range(4, 18, 2):
            a(f'  v_add_f32 {t0}, {t0}, v{XF+k}')
            a(f'  v_add_f32 {t1}, {t1}, v{XF+k+1}')
        a(f'  v_add_f32 {t0}, {t0}, {t1}')
        half_sum(t0, t1)
        a(f'  v_mul_f32 {mu}, {f32(1.0/576)}, {t0}')
        for k in range(18):
            tt = t1 if k & 1 else t2
            a(f'  v_sub_f32 {tt}, v{XF+k}, {mu}')
            if k == 0:
                a(f'  v_mul_f32 {t0}, {tt}, {tt}')
            else:
                a(f'  v_fmac_f32 {t0}, {tt}, {tt}')
        half_sum(t0, t1)
        a(f'  v_mul_f32 {t0}, {f32(1.0/576)}, {t0}')
        rnd(t0)
        a(f'  v_add_f32 {t0}, {f32(1e-5)}, {t0}')
        rnd(t0)
        a(f'  v_sqrt_f32 {t0}, {t0}')
        a('  s_nop 0')
        rnd(t0)
        a(f'  v_rcp_f32 {rd}, {t0}')
        rnd(mu)
    def norm_pair(lo, hi, dst, mu, rd):
        a(f'  v_sub_f32 {lo}, {lo}, {mu}')
        a(f'  v_sub_f32 {hi}, {hi}, {mu}')
        a(f'  v_cvt_pk_bf16_f32 {lo}, {lo}, {hi}')
        a(f'  v_and_b32 {hi}, 0xffff0000, {lo}')
        a(f'  v_lshlrev_b32 {lo}, 16, {lo}')
        a(f'  v_mul_f32 {lo}, {lo}, {rd}')
        a(f'  v_mul_f32 {hi}, {hi}, {rd}')
        a(f'  v_cvt_pk_bf16_f32 {dst}, {lo}, {hi}')
    a('  s_waitcnt vmcnt(22)')
    stamp('xarr')
    for k in range(9):
        a(f'  v_lshlrev_b32 v{XF+2*k}, 16, v{XA+k}')
        a(f'  v_and_b32 v{XF+2*k+1}, 0xffff0000, v{XA+k}')
    vMu, vRd = 'v32', 'v33'
    a('  s_waitcnt lgkmcnt(0)')
    ln_stats(vMu, vRd, 'v34', 'v35', 'v36')
    a('  s_waitcnt vmcnt(19)')
    a(f'  s_mul_i32 {sTag}, {sTag}, 1664525')
    a(f'  s_add_u32 {sTag}, {sTag}, 1013904223')
    a(f'  s_mul_i32 {sSpin}, {sSpin}, 0x9e3779b4')
    a(f'  s_add_u32 {sTag}, {sTag}, {sSpin}')
    a(f'  v_mov_b32 {vTagV}, {sTag}')
    for k in range(9):
        r = XB + k
        a(f'  v_lshlrev_b32 v34, 16, v{r}')
        a(f'  v_and_b32 v35, 0xffff0000, v{r}')
        norm_pair('v34', 'v35', f'v{r}', vMu, vRd)
        for hh in range(2):
            af = 24 + hh * 4
            for d in range(4):
                a(f'  v_perm_b32 v{af+d}, v{r}, v{r}, v{SEL+hh*4+d}')
        for hh in range(2):
            n = 2 * k + hh
            af = 24 + hh * 4
            if hh == 0:
                a(f'  s_waitcnt vmcnt({17 - 2*k})')
                a('  s_nop 0')
            c = '0' if n == 0 else vr(16)
            a(f'  v_mfma_f32_16x16x32_bf16 {vr(16)}, {vr(af)}, {vr(WQ+4*n)}, {c}')
    a('  v_and_b32 v34, 15, v0')
    a('  v_lshlrev_b32 v34, 6, v34')
    a('  v_bfe_u32 v35, v0, 4, 1')
    a('  v_lshl_add_u32 v34, v35, 5, v34')
    a('  v_lshrrev_b32 v35, 5, v0')
    a('  v_lshl_add_u32 v34, v35, 10, v34')
    a(f'  s_lshl_b32 {sT0}, {sHKV}, 4')
    a(f'  s_add_u32 {sT1}, {sT0}, {sI16}')
    a(f'  s_lshl_b32 {sT1}, {sT1}, 11')
    a(f'  s_add_u32 {sT1}, {sT1}, {QBOX}')
    a(f'  v_mov_b32 v21, {sTag}')
    a(f'  v_mov_b32 v23, {sTag}')
    a('  v_mov_b32 v22, v19')
    a('  v_mov_b32 v20, v18')
    a('  v_mov_b32 v18, v17')
    a(f'  v_mov_b32 v17, {sTag}')
    a(f'  v_mov_b32 v19, {sTag}')
    a(f'  buffer_store_dwordx4 v[16:19], v34, {WS_}, {sT1} offen sc1')
    a(f'  buffer_store_dwordx4 v[20:23], v34, {WS_}, {sT1} offen offset:16 sc1')
    stamp('qpub')
    sMu1, sRd1 = sU[8], sU[9]
    a(f'  s_lshl_b32 {sU[3]}, {sB}, 3')
    a(f'  v_readlane_b32 {sMu1}, {vMu}, {sU[3]}')
    a(f'  v_readlane_b32 {sRd1}, {vRd}, {sU[3]}')
    for k in range(9):
        norm_pair(f'v{XF+2*k}', f'v{XF+2*k+1}', 'v34', vMu, vRd)
        a(f'  v_lshlrev_b32 v{XF+2*k}, 16, v34')
        a(f'  v_and_b32 v{XF+2*k+1}, 0xffff0000, v34')
    ln_stats(vMu, vRd, 'v34', 'v35', 'v36')
    vH = 'v37'
    a('  s_waitcnt vmcnt(2)')
    a(f'  v_lshlrev_b32 {vH}, 16, {vXC}')
    a(f'  v_subrev_f32 {vH}, {sMu1}, {vH}')
    rnd(vH)
    a(f'  v_mul_f32 {vH}, {sRd1}, {vH}')
    rnd(vH)
    a(f'  v_readlane_b32 {sMu1}, {vMu}, {sU[3]}')
    a(f'  v_readlane_b32 {sRd1}, {vRd}, {sU[3]}')
    a('  s_nop 1')
    a(f'  v_subrev_f32 {vH}, {sMu1}, {vH}')
    rnd(vH)
    a(f'  v_mul_f32 {vH}, {sRd1}, {vH}')
    rnd(vH)
    vBacc, vGC0 = 'v39', 'v40'
    a(f'  v_mov_b32 {vBacc}, 0')
    a(f'  v_mov_b32 {vGC0}, {f32(GC0)}')
    sBo, sCnt, sLim = 's36', 's39', 's40'
    a(f'  s_mul_i32 {sBo}, {sFG}, 768')
    a(f'  s_mov_b32 {sCnt}, 0')
    a(f'  s_mov_b32 {sLim}, {NB1}')
    a('L_bloop:')
    a(f'  s_load_dwordx4 s[80:83], s[16:17], {sBo}')
    a(f'  s_load_dwordx4 s[84:87], s[18:19], {sBo}')
    a(f'  s_load_dwordx4 s[88:91], s[20:21], {sBo}')
    a('  s_waitcnt lgkmcnt(0)')
    for k in range(4):
        x0, x1, y0, y1, pk = 'v42', 'v43', 'v44', 'v45', 'v46'
        a(f'  s_lshl_b32 s64, s{80+k}, 16')
        a(f'  s_and_b32 s65, s{80+k}, 0xffff0000')
        a(f'  s_lshl_b32 s66, s{84+k}, 16')
        a(f'  s_and_b32 s67, s{84+k}, 0xffff0000')
        a(f'  s_lshl_b32 s68, s{88+k}, 16')
        a(f'  s_and_b32 s69, s{88+k}, 0xffff0000')
        a(f'  v_mul_f32 {x0}, s64, {vH}')
        a(f'  v_mul_f32 {x1}, s65, {vH}')
        a(f'  v_cvt_pk_bf16_f32 {pk}, {x0}, {x1}')
        a(f'  v_lshlrev_b32 {x0}, 16, {pk}')
        a(f'  v_and_b32 {x1}, 0xffff0000, {pk}')
        a(f'  v_add_f32 {x0}, s66, {x0}')
        a(f'  v_add_f32 {x1}, s67, {x1}')
        a(f'  v_cvt_pk_bf16_f32 {pk}, {x0}, {x1}')
        a(f'  v_lshlrev_b32 {x0}, 16, {pk}')
        a(f'  v_and_b32 {x1}, 0xffff0000, {pk}')
        a(f'  v_mul_f32 {y0}, {x0}, {x0}')
        a(f'  v_mul_f32 {y1}, {x1}, {x1}')
        a(f'  v_fma_f32 {y0}, {y0}, {sGC1}, {vGC0}')
        a(f'  v_fma_f32 {y1}, {y1}, {sGC1}, {vGC0}')
        a(f'  v_mul_f32 {y0}, {y0}, {x0}')
        a(f'  v_mul_f32 {y1}, {y1}, {x1}')
        a(f'  v_exp_f32 {y0}, {y0}')
        a(f'  v_exp_f32 {y1}, {y1}')
        a(f'  v_add_f32 {y0}, 1.0, {y0}')
        a(f'  v_add_f32 {y1}, 1.0, {y1}')
        a(f'  v_rcp_f32 {y0}, {y0}')
        a(f'  v_rcp_f32 {y1}, {y1}')
        a(f'  v_mul_f32 {y0}, {y0}, {x0}')
        a(f'  v_mul_f32 {y1}, {y1}, {x1}')
        a(f'  v_cvt_pk_bf16_f32 {pk}, {y0}, {y1}')
        a(f'  v_lshlrev_b32 {x0}, 16, {pk}')
        a(f'  v_and_b32 {x1}, 0xffff0000, {pk}')
        a(f'  v_fmac_f32 {vBacc}, s68, {x0}')
        a(f'  v_fmac_f32 {vBacc}, s69, {x1}')
    a(f'  s_add_u32 {sBo}, {sBo}, 16')
    a(f'  s_add_u32 {sCnt}, {sCnt}, 1')
    a(f'  s_cmp_lt_u32 {sCnt}, {sLim}')
    a('  s_cbranch_scc1 L_bloop')
    a(f'  s_cmp_eq_u32 {sLim}, 48')
    a('  s_cbranch_scc1 L_bdone')
    a('  v_and_b32 v34, 31, v0')
    a('  v_lshlrev_b32 v34, 5, v34')
    a('  v_lshrrev_b32 v35, 5, v0')
    a('  v_lshl_add_u32 v34, v35, 11, v34')
    a(f'  s_lshl_b32 {sT0}, {sHKV}, 15')
    a(f'  s_lshl_b32 {sT1}, {sB}, 10')
    a(f'  s_add_u32 {sT0}, {sT0}, {sT1}')
    a(f'  s_add_u32 {sT0}, {sT0}, {QBOX}')
    a(f'  s_mov_b32 {sSpin}, 0')
    stamp('q0')
    a('L_pollq:')
    a(f'  s_mov_b32 {sT1}, {sT0}')
    for k in range(8):
        a(f'  buffer_load_dwordx4 {vr(GQ+8*k)}, v34, {WS_}, {sT1} offen sc1')
        a(f'  buffer_load_dwordx4 {vr(GQ+8*k+4)}, v34, {WS_}, {sT1} offen offset:16 sc1')
        if k < 7:
            a(f'  s_add_u32 {sT1}, {sT1}, 4096')
    a('  s_waitcnt vmcnt(0)')
    tagcheck(GQ, 16, 'L_gotq', 'L_pollq', 16)
    a('L_gotq:')
    for k in range(1, 8):
        for r in range(4):
            a(f'  v_add_f32 v{GQ+2*r}, v{GQ+2*r}, v{GQ+8*k+2*r}')
    a(f'  v_cvt_pk_bf16_f32 v16, v{GQ}, v{GQ+2}')
    a(f'  v_cvt_pk_bf16_f32 v17, v{GQ+4}, v{GQ+6}')
    a('  v_lshlrev_b32 v34, 3, v0')
    a(f'  ds_write_b64 v34, v[16:17] offset:{L_Q}')
    a('  v_mov_b32 v35, 1')
    a(f'  ds_write_b32 {vCtl}, {vTagV} offset:{L_TAG-L_CNT}')
    a('  s_waitcnt lgkmcnt(0)')
    a(f'  ds_write_b32 {vCtl}, v35 offset:{L_FLAG-L_CNT}')
    stamp('qready')
    a('  s_setprio 0')
    a(f'  s_mov_b32 {sLim}, 48')
    a('  s_branch L_bloop')
    a('L_bdone:')
    a(f'  s_lshl_b32 {sT1}, {sL}, 12')
    a(f'  s_add_u32 {sT1}, {sT1}, {BLK}')
    a(f'  s_cmp_ge_u32 {sIdx}, 108')
    a('  s_cbranch_scc1 L_nobst')
    a(f'  v_mov_b32 v42, {vBacc}')
    a(f'  v_mov_b32 v43, {vTagV}')
    a('  v_lshlrev_b32 v34, 3, v0')
    a(f'  buffer_store_dwordx2 v[42:43], v34, {WS_}, {sT1} offen offset:{B_B} sc1')
    a('L_nobst:')
    a(f'  s_cmp_lg_u32 {sC}, 0')
    a('  s_cbranch_scc1 L_noctr')
    a('  v_mov_b32 v44, 0')
    a(f'  v_mov_b32 v45, {vTagV}')
    a('  s_mov_b64 exec, 1')
    a(f'  buffer_store_dwordx2 v[44:45], off, {WS_}, {sT1} offset:{B_CTR} sc1')
    a('  s_mov_b64 exec, -1')
    a('L_noctr:')
    stamp('bdone')
    def wait_cnt(lbl, val, sl):
        a(f'{lbl}:')
        a(f'  ds_read_b32 v35, {vCtl}')
        a(f'  s_sleep {sl}')
        a('  s_waitcnt lgkmcnt(0)')
        a(f'  v_readfirstlane_b32 {sT0}, v35')
        a(f'  s_cmp_lt_u32 {sT0}, {val}')
        a(f'  s_cbranch_scc1 {lbl}')
    a(f'  s_lshl_b32 {sT0}, {sC}, 1')
    a(f'  s_add_u32 {sT0}, {sT0}, {sB}')
    a(f'  s_cmp_lg_u32 {sT0}, {sHKV}')
    a('  s_cbranch_scc1 L_tickets')
    wait_cnt('L_bgwait', BG << 11, 32)
    a(f'  s_mul_i32 {sT0}, {sC}, 72')
    a(f'  v_lshl_add_u32 v34, v0, 1, {sT0}')
    a('  v_lshrrev_b32 v42, 6, v34')
    a('  v_lshlrev_b32 v42, 12, v42')
    a('  v_and_b32 v43, 63, v34')
    a('  v_lshl_add_u32 v42, v43, 3, v42')
    a('  v_lshlrev_b32 v51, 1, v34')
    a(f'  s_mul_i32 {sT1}, {sB}, 1152')
    a(f'  v_add_u32 v51, {sT1}, v51')
    a(f'  s_lshl_b32 {sT0}, {sB}, 19')
    a(f'  s_add_u32 {sT0}, {sT0}, {BLK}')
    a('  s_mov_b32 exec_hi, 0xf')
    a(f'  buffer_load_dword v50, v51, {X_}, 0 offen')
    a(f'  s_mov_b32 {sSpin}, 0')
    a('L_pollb:')
    a(f'  s_mov_b32 {sT1}, {sT0}')
    for k in range(12):
        a(f'  buffer_load_dwordx4 {vr(GQ+4*k)}, v42, {WS_}, {sT1} offen offset:{B_B} sc1')
        if k < 11:
            a(f'  s_add_u32 {sT1}, {sT1}, {9*4096}')
    a('  s_waitcnt vmcnt(0)')
    tagcheck(GQ, 12, 'L_gotb', 'L_pollb', 64)
    a('L_gotb:')
    for k in range(1, 12):
        a(f'  v_add_f32 v{GQ}, v{GQ}, v{GQ+4*k}')
        a(f'  v_add_f32 v{GQ+2}, v{GQ+2}, v{GQ+4*k+2}')
    a(f'  s_lshl_b32 {sB2}, {sB2}, 16')
    a(f'  v_cvt_pk_bf16_f32 v34, v{GQ}, v{GQ+2}')
    a('  v_lshlrev_b32 v48, 16, v34')
    a('  v_and_b32 v49, 0xffff0000, v34')
    a(f'  v_add_f32 v48, {sB2}, v48')
    a(f'  v_add_f32 v49, {sB2}, v49')
    a('  v_cvt_pk_bf16_f32 v34, v48, v49')
    a('  v_lshlrev_b32 v48, 16, v34')
    a('  v_and_b32 v49, 0xffff0000, v34')
    a('  s_mov_b64 exec, -1')
    a('L_tickets:')
    sF, sPend, sEnd = 's36', 's37', 's38'
    sN = ['s80', 's81', 's82', 's83']
    vK = ['v52', 'v54', 'v56', 'v58']
    vKh = ['v53', 'v55', 'v57', 'v59']
    a(f'  s_and_b32 {sT0}, s2, 0xf8')
    a(f'  s_lshl_b32 s40, {sT0}, 12')
    a(f'  s_add_u32 s40, s40, {BLK}')
    a(f'  s_mov_b32 {sF}, 0')
    a(f'  s_mov_b32 {sPend}, 0')
    a(f'  s_mov_b32 {sEnd}, 0')
    a(f'  s_mov_b32 {sSpin}, 0')
    for k in range(4):
        a(f'  s_mov_b32 {sN[k]}, 0')
        a(f'  v_mov_b32 {vK[k]}, 0')
        a(f'  v_mov_b32 {vKh[k]}, 0')
    a('  v_mov_b32 v45, 0')
    a('  s_waitcnt vmcnt(0)')
    wait_cnt('L_tkwait', (NS - R - 2) << 11, 8)
    a('  s_setprio 3')
    a('L_tkloop:')
    for k in range(4):
        a('  s_waitcnt vmcnt(3)')
        a(f'  ds_read_b32 v35, {vCtl}')
        a(f'  v_readfirstlane_b32 {sT0}, {vK[k]}')
        a(f'  v_readfirstlane_b32 {sT1}, {vKh[k]}')
        a(f'  s_sub_u32 {sPend}, {sPend}, {sN[k]}')
        a(f'  s_cmp_eq_u32 {sT1}, {sTag}')
        a(f'  s_cselect_b32 {sN[k]}, {sN[k]}, 0')
        a(f'  s_cmp_eq_u32 {sN[k]}, 0')
        a(f'  s_cbranch_scc1 L_tkn{k}')
        a(f'  s_cmp_lt_u32 {sT0}, {8*P - DK}')
        a(f'  s_cbranch_scc1 L_tkf{k}')
        a(f'  ds_write_b32 {vCtl}, v45 offset:{L_FIN-L_CNT}')
        a(f'L_tkf{k}:')
        a(f'  s_add_u32 {sT1}, {sT0}, {sN[k]}')
        a(f'  s_min_u32 {sT1}, {sT1}, {8*P}')
        a(f'  s_min_u32 s41, {sT0}, {8*P}')
        a(f'  s_sub_u32 s41, {sT1}, s41')
        a(f'  s_cmp_ge_u32 {sT1}, {8*P}')
        a(f'  s_cselect_b32 {sEnd}, 1, {sEnd}')
        a('  s_cmp_eq_u32 s41, 0')
        a(f'  s_cbranch_scc1 L_tkn{k}')
        a(f'  v_add_u32 v42, {sT0}, v0')
        a('  v_lshrrev_b32 v43, 3, v42')
        a(f'  v_add_u32 v43, {NS}, v43')
        a('  v_lshlrev_b32 v43, 11, v43')
        a('  v_and_b32 v44, 0xffff8000, v43')
        a('  v_add_u32 v43, v43, v44')
        a(f'  v_xor_b32 v43, {sMask}, v43')
        a('  v_and_b32 v42, 7, v42')
        a('  v_lshl_add_u32 v43, v42, 20, v43')
        a(f'  v_add_u32 v44, {sF}, v0')
        a('  v_lshlrev_b32 v44, 2, v44')
        a('  s_bfm_b64 exec, s41, 0')
        a(f'  ds_write_b32 v44, v43 offset:{L_POOL}')
        a('  s_mov_b64 exec, -1')
        a(f'  s_add_u32 {sF}, {sF}, s41')
        a(f'L_tkn{k}:')
        a(f'  s_cmp_eq_u32 {sEnd}, 1')
        a(f'  s_cselect_b32 {sT1}, {sPend}, 1')
        a(f'  s_cmp_eq_u32 {sT1}, 0')
        a('  s_cbranch_scc1 L_tkend')
        a('  s_waitcnt lgkmcnt(0)')
        a(f'  v_readfirstlane_b32 {sT0}, v35')
        a(f'  s_lshr_b32 {sT0}, {sT0}, 11')
        a(f'  s_sub_u32 {sT0}, {sT0}, {NS - R}')
        a(f'  s_sub_u32 {sT0}, {sT0}, {sF}')
        a(f'  s_sub_u32 {sT0}, {sT0}, {sPend}')
        a(f'  s_max_i32 {sT0}, {sT0}, 0')
        a(f'  s_min_i32 {sT0}, {sT0}, {G}')
        a(f'  s_cmp_eq_u32 {sEnd}, 1')
        a(f'  s_cselect_b32 {sN[k]}, 0, {sT0}')
        a(f'  s_add_u32 {sPend}, {sPend}, {sN[k]}')
        a(f'  v_mov_b32 {vK[k]}, {sN[k]}')
        a(f'  v_mov_b32 {vKh[k]}, 0')
        a(f'  s_cmp_eq_u32 {sN[k]}, 0')
        a(f'  s_cselect_b32 {sT1}, {INVALID}, s40')
        a('  s_mov_b64 exec, 1')
        a(f'  buffer_atomic_add_x2 v[{52+2*k}:{53+2*k}], off, {WS_}, {sT1} offset:{B_CTR} sc0')
        a('  s_mov_b64 exec, -1')
        a('  s_sleep 2')
    a(f'  s_add_u32 {sSpin}, {sSpin}, 1')
    a(f'  s_cmp_lt_u32 {sSpin}, 0x8000')
    a('  s_cbranch_scc1 L_tkloop')
    a('L_tkend:')
    a(f'  ds_write_b32 {vCtl}, v45 offset:{L_FIN-L_CNT}')
    a(f'  v_add_u32 v44, {sF}, v0')
    a('  v_lshlrev_b32 v44, 2, v44')
    a(f'  v_mov_b32 v43, {INVALID}')
    a(f'  ds_write_b32 v44, v43 offset:{L_POOL}')
    stamp('poolend')
    a('  s_waitcnt vmcnt(0) lgkmcnt(0)')
    E, WOF = 64, 128
    a('  v_lshrrev_b32 v24, 5, v0')
    a('  v_lshlrev_b32 v24, 6, v24')
    a('  v_lshlrev_b32 v25, 5, v0')
    for r in (29, 31, 33, 35, 37, 39):
        a(f'  v_mov_b32 v{r}, {vTagV}')
    a(f'  s_lshl_b32 {sT1}, {sL}, 12')
    a(f'  s_add_u32 {sT1}, {sT1}, {BLK}')
    a(f'  s_lshl_b32 s41, {sL}, 5')
    a(f'  s_add_u32 s41, s41, {GML}')
    a('L_dwait:')
    a(f'  ds_read_b32 v26, {vCtl} offset:{L_DONE-L_CNT}')
    a('  s_waitcnt lgkmcnt(0)')
    a(f'  v_readfirstlane_b32 {sT0}, v26')
    a(f'  s_cmp_lt_u32 {sT0}, 7')
    a('  s_cbranch_scc1 L_dwait')
    ML = E + 32
    for k in range(4):
        a(f'  ds_read_b128 {vr(ML+4*k)}, v24 offset:{L_ML+16*k}')
    for k in range(1, 8):
        a(f'  ds_read_b128 {vr(E+4*k)}, {vL16} offset:{L_OP+1024*k}')
    a('  s_waitcnt lgkmcnt(7)')
    a(f'  v_max3_f32 v36, v{ML+2}, v{ML+4}, v{ML+6}')
    a(f'  v_max3_f32 v36, v36, v{ML+8}, v{ML+10}')
    a(f'  v_max3_f32 v36, v36, v{ML+12}, v{ML+14}')
    a(f'  v_mul_f32 v26, {sNLog2e}, v36')
    for k in range(1, 8):
        a(f'  v_fma_f32 v{ML+2*k}, v{ML+2*k}, {sLog2e}, v26')
    for k in range(1, 8):
        a(f'  v_exp_f32 v{ML+2*k}, v{ML+2*k}')
    a(f'  v_mul_f32 v38, v{ML+2}, v{ML+3}')
    for k in range(2, 8):
        a(f'  v_fmac_f32 v38, v{ML+2*k}, v{ML+2*k+1}')
    a('  s_waitcnt lgkmcnt(0)')
    for r in range(4):
        a(f'  v_mul_f32 v{28+2*r}, v{ML+2}, v{E+4+r}')
    for k in range(2, 8):
        for r in range(4):
            a(f'  v_fmac_f32 v{28+2*r}, v{ML+2*k}, v{E+4*k+r}')
    a(f'  buffer_store_dwordx4 v[28:31], v25, {WS_}, {sT1} offen sc1')
    a(f'  buffer_store_dwordx4 v[32:35], v25, {WS_}, {sT1} offen offset:16 sc1')
    a('  v_lshrrev_b32 v24, 2, v24')
    a('  s_mov_b32 exec_lo, 1')
    a('  s_mov_b32 exec_hi, 1')
    a(f'  buffer_store_dwordx4 v[36:39], v24, {WS_}, s41 offen sc1')
    a('  s_mov_b64 exec, -1')
    stamp('pub1')
    a('  s_branch L_tail')

    a('.p2align 6')
    a('L_done:')
    stamp('loopend')
    tmp = f'v{T}'
    for p in ['v_permlane32_swap_b32', 'v_permlane16_swap_b32']:
        a(f'  v_mov_b32 {tmp}, {vLs}')
        a('  s_nop 1')
        a(f'  {p} {tmp}, {vLs}')
        a(f'  v_add_f32 {vLs}, {vLs}, {tmp}')
    a('  v_and_b32 v24, 15, v0')
    a('  v_lshlrev_b32 v24, 5, v24')
    a('  v_bfe_u32 v25, v0, 4, 1')
    a('  v_lshl_add_u32 v24, v25, 4, v24')
    a('  v_lshrrev_b32 v25, 5, v0')
    a('  v_lshl_add_u32 v24, v25, 9, v24')
    a(f'  s_lshl_b32 {sT0}, {sW}, 10')
    a(f'  v_add_u32 v24, {sT0}, v24')
    a(f'  ds_write_b128 v24, {vr(O)} offset:{L_OP}')
    a('  v_bfe_u32 v24, v0, 3, 1')
    a('  v_lshlrev_b32 v24, 6, v24')
    a(f'  s_lshl_b32 {sT0}, {sW}, 3')
    a(f'  v_add_u32 v24, {sT0}, v24')
    a(f'  v_mov_b32 v26, {vM}')
    a(f'  v_mov_b32 v27, {vLs}')
    a('  v_mov_b32 v28, 1')
    a('  s_mov_b64 exec, 0x101')
    a(f'  ds_write_b64 v24, v[26:27] offset:{L_ML}')
    a('  s_mov_b64 exec, 1')
    a('  s_waitcnt lgkmcnt(0)')
    a(f'  ds_add_u32 {vCtl}, v28 offset:{L_DONE-L_CNT}')
    a('  s_mov_b64 exec, -1')
    a(f'  s_cmp_lg_u32 {sW}, 3')
    a('  s_cbranch_scc1 L_nodma')
    a('  v_mul_u32_u24 v34, 57, v0')
    a('  v_lshrrev_b32 v34, 9, v34')
    a('  v_mul_u32_u24 v35, 9, v34')
    a('  v_sub_u32 v35, v0, v35')
    a('  v_lshlrev_b32 v35, 4, v35')
    a('  v_mul_u32_u24 v34, 1152, v34')
    a('  v_add_u32 v34, v34, v35')
    a(f'  s_mul_i32 s64, {sHKV}, {256*1152}')
    a(f'  s_mul_i32 {sT1}, {sC}, 144')
    a(f'  s_add_u32 s64, s64, {sT1}')
    a(f'  s_mov_b32 s65, {L_WO}')
    a('  s_waitcnt vmcnt(0)')
    a('L_fwait:')
    a(f'  ds_read_b64 v[36:37], {vCtl}')
    a('  s_sleep 4')
    a('  s_waitcnt lgkmcnt(0)')
    a(f'  v_readfirstlane_b32 {sT0}, v36')
    a(f'  v_readfirstlane_b32 {sT1}, v37')
    a(f'  s_cmp_lt_u32 {sT0}, {sT1}')
    a('  s_cbranch_scc1 L_fwait')
    stamp('dma0')
    a('L_dmaloop:')
    a('  s_mov_b32 m0, s65')
    a('  s_add_u32 s65, s65, 1008')
    a(f'  buffer_load_dwordx4 v34, {WO_}, s64 offen nt lds')
    a(f'  s_add_u32 s64, s64, {7*1152}')
    a(f'  s_cmp_lt_u32 s65, {L_WO + 37*1008}')
    a('  s_cbranch_scc1 L_dmaloop')
    a('  s_branch L_tail')
    a('L_nodma:')
    a('  s_waitcnt vmcnt(0)')

    a('L_tail:')
    if 'notail' in exp:
        a('  s_branch L_fin')
    a(f'  s_lshl_b32 {sT1}, {sL}, 12')
    a(f'  s_add_u32 {sT1}, {sT1}, {BLK}')
    a('  v_lshrrev_b32 v24, 4, v0')
    a('  v_mul_u32_u24 v24, 1152, v24')
    a('  v_bfe_u32 v25, v0, 2, 2')
    a('  v_mul_u32_u24 v25, 144, v25')
    a('  v_and_b32 v26, 3, v0')
    a('  v_lshlrev_b32 v26, 3, v26')
    a('  v_add3_u32 v24, v24, v25, v26')
    a(f'  s_mul_i32 {sT0}, {sW}, 4608')
    a(f'  v_add_u32 v24, {sT0}, v24')
    a('  v_and_b32 v25, 7, v0')
    a('  v_lshlrev_b32 v27, 12, v25')
    a('  v_lshlrev_b32 v25, 5, v25')
    a('  v_lshrrev_b32 v26, 3, v0')
    a('  v_lshl_add_u32 v26, v26, 5, v27')
    a(f'  s_and_b32 {sT0}, {sT1}, 0xffff8000')
    a(f'  s_lshl_b32 s64, {sW}, 8')
    a(f'  s_add_u32 s64, s64, {sT0}')
    a(f'  s_and_b32 s65, {sL}, 0xf8')
    a('  s_lshl_b32 s65, s65, 5')
    a(f'  s_add_u32 s65, s65, {GML}')
    a(f'  s_lshr_b32 {sT0}, {sW}, 2')
    a(f'  s_lshl_b32 {sT0}, {sT0}, 4')
    a(f'  s_add_u32 s65, s65, {sT0}')
    a(f'  s_mov_b32 {sSpin}, 0')
    a(f'  s_mul_i32 {sT0}, {sW}, 320')
    a('  v_lshlrev_b32 v44, 2, v0')
    a(f'  v_add_u32 v44, {sT0}, v44')
    a('  s_barrier')
    stamp('barx')
    def p1loads():
        a(f'  buffer_load_dwordx4 {vr(E)}, v26, {WS_}, s64 offen sc1')
        a(f'  buffer_load_dwordx4 {vr(E+4)}, v26, {WS_}, s64 offen offset:16 sc1')
        a(f'  buffer_load_dwordx4 {vr(E+8)}, v25, {WS_}, s65 offen sc1')
    p1loads()
    a('  s_waitcnt vmcnt(3)')
    a('  s_barrier')
    stamp('dma1')
    for ct in range(5):
        a(f'  ds_read_b64_tr_b16 {vr(WOF+4*ct,2)}, v24 offset:{L_WO+ct*32}')
        a(f'  ds_read_b64_tr_b16 {vr(WOF+4*ct+2,2)}, v24 offset:{L_WO+ct*32+4*144}')
    a('  s_branch L_chk1')
    a('L_poll1:')
    p1loads()
    a('L_chk1:')
    a('  s_waitcnt vmcnt(0)')
    tagcheck(E, 3, 'L_got1', 'L_poll1', SL1, shrink=True)
    a('L_got1:')
    a('  s_mov_b64 exec, -1')
    stamp('hop1')
    R8 = ['quad_perm:[1,0,3,2]', 'quad_perm:[2,3,0,1]', 'row_half_mirror']
    vm, vl = f'v{E+8}', f'v{E+10}'
    od = [f'v{E+2*r}' for r in range(4)]
    a(f'  v_mov_b32 v34, {vm}')
    for m in R8:
        a('  s_nop 1')
        a(f'  v_max_f32_dpp v34, v34, v34 {m}{DPPM}')
    a(f'  v_sub_f32 {vm}, {vm}, v34')
    a(f'  v_mul_f32 {vm}, {sLog2e}, {vm}')
    a(f'  v_exp_f32 {vm}, {vm}')
    a('  s_nop 0')
    a(f'  v_mul_f32 {vl}, {vl}, {vm}')
    for r in range(4):
        a(f'  v_mul_f32 {od[r]}, {od[r]}, {vm}')
    for m in R8:
        a(f'  v_add_f32_dpp {vl}, {vl}, {vl} {m}{DPPM}')
        for r in range(4):
            a(f'  v_add_f32_dpp {od[r]}, {od[r]}, {od[r]} {m}{DPPM}')
    a(f'  v_rcp_f32 {vl}, {vl}')
    a('  s_nop 0')
    for r in range(4):
        a(f'  v_mul_f32 {od[r]}, {od[r]}, {vl}')
    a(f'  v_cvt_pk_bf16_f32 v40, {od[0]}, {od[1]}')
    a(f'  v_cvt_pk_bf16_f32 v41, {od[2]}, {od[3]}')
    a('  s_nop 1')
    a(f'  v_mov_b32_dpp v42, v40 row_ror:8{DPPM}')
    a(f'  v_mov_b32_dpp v43, v41 row_ror:8{DPPM}')
    a('  s_waitcnt lgkmcnt(0)')
    a('  s_nop 0')
    for ct in range(5):
        a(f'  v_mfma_f32_16x16x32_bf16 {vr(E+16+4*ct)}, v[40:43], {vr(WOF+4*ct)}, 0')
    a('  s_mov_b64 exec, 0xffff')
    a('  s_nop 7')
    for ct in range(5):
        a(f'  ds_write_b32 v44, v{E+16+4*ct} offset:{L_Y+64*ct}')
    a('  s_mov_b64 exec, -1')
    a('  s_waitcnt lgkmcnt(0)')
    a('  s_barrier')
    a(f'  s_cmp_lg_u32 {sW}, 0')
    a('  s_cbranch_scc1 L_fin')
    a('  v_lshlrev_b32 v24, 3, v0')
    a('  s_mov_b32 exec_hi, 0xf')
    for k in range(8):
        a(f'  ds_read_b64 {vr(E+2*k,2)}, v24 offset:{L_Y+320*k}')
    a(f'  v_mov_b32 v29, {vTagV}')
    a(f'  v_mov_b32 v31, {vTagV}')
    a('  s_waitcnt lgkmcnt(6)')
    a(f'  v_add_f32 v28, v{E}, v{E+2}')
    a(f'  v_add_f32 v30, v{E+1}, v{E+3}')
    for k in range(2, 8):
        a(f'  s_waitcnt lgkmcnt({7-k})')
        a(f'  v_add_f32 v28, v28, v{E+2*k}')
        a(f'  v_add_f32 v30, v30, v{E+2*k+1}')
    a(f'  buffer_store_dwordx4 v[28:31], {vL16}, {WS_}, {sT1} offen offset:{B_Y} sc1')
    stamp('pub2')
    a(f'  s_lshl_b32 {sT0}, {sC}, 1')
    a(f'  s_add_u32 {sT0}, {sT0}, {sB}')
    a(f'  s_cmp_lg_u32 {sT0}, {sHKV}')
    a('  s_cbranch_scc1 L_fin')
    srd(60, 's24', 's25', 2304)
    a(f'  s_mul_i32 {sT0}, {sC}, 144')
    a(f'  s_mul_i32 {sT1}, {sB}, 1152')
    a(f'  s_add_u32 {sT0}, {sT0}, {sT1}')
    a(f'  v_lshl_add_u32 v51, v0, 2, {sT0}')
    a(f'  s_lshl_b32 {sT0}, {sB}, 7')
    a(f'  s_add_u32 {sT0}, {sT0}, {sC}')
    a(f'  s_lshl_b32 {sT0}, {sT0}, 12')
    a(f'  s_add_u32 {sT0}, {sT0}, {BLK}')
    a(f'  s_mov_b32 {sSpin}, 0')
    a('L_poll2:')
    a(f'  s_mov_b32 {sT1}, {sT0}')
    for k in range(16):
        a(f'  buffer_load_dwordx4 {vr(E+4*k)}, {vL16}, {WS_}, {sT1} offen offset:{B_Y} sc1')
        if k < 15:
            a(f'  s_add_u32 {sT1}, {sT1}, 0x8000')
    a('  s_waitcnt vmcnt(0)')
    tagcheck(E, 16, 'L_got2', 'L_poll2', SL2)
    a('L_got2:')
    for k in range(1, 16):
        a(f'  v_add_f32 v{E}, v{E}, v{E+4*k}')
        a(f'  v_add_f32 v{E+2}, v{E+2}, v{E+4*k+2}')
    a(f'  v_cvt_pk_bf16_f32 v30, v{E}, v{E+2}')
    a('  v_lshlrev_b32 v28, 16, v30')
    a('  v_and_b32 v29, 0xffff0000, v30')
    a('  v_lshlrev_b32 v32, 16, v50')
    a('  v_and_b32 v33, 0xffff0000, v50')
    a('  v_add_f32 v28, v28, v32')
    a('  v_add_f32 v29, v29, v33')
    a('  v_cvt_pk_bf16_f32 v30, v28, v29')
    a('  v_lshlrev_b32 v28, 16, v30')
    a('  v_and_b32 v29, 0xffff0000, v30')
    a('  v_add_f32 v28, v28, v48')
    a('  v_add_f32 v29, v29, v49')
    a('  v_cvt_pk_bf16_f32 v30, v28, v29')
    a(f'  buffer_store_dword v30, v51, {OUT_}, 0 offen')
    a(f'  s_cmp_lg_u32 {sL}, 0')
    a('  s_cbranch_scc1 L_fin')
    a('  s_mov_b64 exec, 1')
    a(f'  s_mov_b32 {sT0}, {EP2}')
    a(f'  buffer_store_dword {vTagV}, off, {WS_}, 0')
    a(f'  buffer_store_dword {vTagV}, off, {WS_}, {sT0}')
    a('L_fin:')
    if 'pad' in exp:
        if PADWG >= 0:
            a(f'  s_cmp_lg_u32 s2, {PADWG}')
            a('  s_cbranch_scc1 L_end')
        if PADW >= 0:
            a(f'  s_cmp_lg_u32 {sW}, {PADW}')
            a('  s_cbranch_scc1 L_end')
        a('L_padl:')
        a('  s_memrealtime s[64:65]')
        a('  s_waitcnt lgkmcnt(0)')
        a(f'  s_sub_u32 s64, s64, s{sTs}')
        a('  s_cmp_lt_u32 s64, 12000')
        a('  s_cbranch_scc1 L_padl')
        a('  s_branch L_end')
    if ts and 'dbgts' in exp:
        a(f'  s_cmp_gt_u32 {sW}, 4')
        a('  s_cbranch_scc1 L_end')
        a('  s_and_b32 s64, s2, 15')
        a(f'  s_cmp_lg_u32 s64, 0')
        a('  s_cbranch_scc1 L_end')
    if ts:
        a('  s_waitcnt vmcnt(0)')
        a('  s_memrealtime s[64:65]')
        a('  s_waitcnt lgkmcnt(0)')
        for i in range(8):
            a(f'  v_mov_b32 v{24+i}, s{sTs+i}')
        a('  v_mov_b32 v32, s64')
        a('  v_mov_b32 v33, s65')
        a('  s_lshl_b32 s66, s2, 3')
        a(f'  s_add_u32 s66, s66, {sW}')
        a('  s_lshl_b32 s66, s66, 6')
        a(f'  s_add_u32 s66, s66, {TS_OFF}')
        a('  v_mov_b32 v1, s66')
        a('  s_mov_b64 exec, 1')
        a('  global_store_dwordx4 v1, v[24:27], s[28:29]')
        a('  global_store_dwordx4 v1, v[28:31], s[28:29] offset:16')
        a('  global_store_dwordx2 v1, v[32:33], s[28:29] offset:32')
    if ts and 'dbgts' in exp:
        a('  s_mov_b64 exec, 1')
        a('  v_mov_b32 v1, 0')
        for i, r in enumerate([24, 26, 28, 30, 32]):
            a(f'  v_cmp_ne_u32 vcc, 0, v{r}')
            a(f'  v_not_b32 v40, v{r}')
            a('  s_nop 1')
            a('  v_cndmask_b32 v40, 0, v40, vcc')
            a(f'  global_atomic_umax v1, v{r}, s[26:27] offset:{8*i}')
            a(f'  global_atomic_umax v1, v40, s[26:27] offset:{8*i+4}')
            a('  s_waitcnt vmcnt(0)')
    a('L_end:')
    a('  s_endpgm')
    body = '\n'.join(o)
    txt = HEADER + f'''; @launch grid=(256,1,1) block=(512,1,1) lds={LDS_BYTES}
.amdgcn_target "amdgcn-amd-amdhsa--gfx950"
.text
.globl {KNAME}
.p2align 8
.type {KNAME},@function
{body}
.section .rodata,"a"
.p2align 6
.amdhsa_kernel {KNAME}
  .amdhsa_next_free_vgpr 256
  .amdhsa_next_free_sgpr 102
  .amdhsa_accum_offset 256
  .amdhsa_group_segment_fixed_size 0
  .amdhsa_kernarg_size 104
  .amdhsa_user_sgpr_count 2
  .amdhsa_user_sgpr_kernarg_segment_ptr 1
  .amdhsa_system_sgpr_workgroup_id_x 1
  .amdhsa_float_denorm_mode_32 3
.end_amdhsa_kernel
'''
    return txt

if __name__ == '__main__':
    out = sys.argv[1]
    ts = 'ts' in sys.argv[2:]
    kw = {}
    for x in sys.argv[2:]:
        if x.startswith('ev='):
            ts = {n: i for i, n in enumerate(x[3:].split(','))}
        elif '=' in x:
            k, v = x.split('='); kw[k] = int(v)
    open(out, 'w').write(gen(ts=ts, exp=sys.argv[2:], **kw))
    print('lds', LDS_BYTES)
```
